```python
import torch

def _softmax(x, axis=-1):
    return torch.softmax(x, dim=axis)
def _gelu(x):
    return torch.nn.functional.gelu(x, approximate="tanh")
def _silu(x):
    return torch.nn.functional.silu(x)
def _sigmoid(x):
    return torch.sigmoid(x)
def _layernorm(x, axis=-1, eps=1e-5):
    m = x.mean(dim=axis, keepdim=True)
    v = x.var(dim=axis, keepdim=True, unbiased=False)
    return (x - m) / torch.sqrt(v + eps)
def _scatter_add(tgt, idx, src, axis=0):
    return tgt.clone().index_add_(axis, idx, src)
def _segment_sum(src, seg, n):
    out = torch.zeros((n,) + src.shape[1:], dtype=src.dtype)
    return out.index_add_(0, seg, src)
def _pad(x, pw):
    flat = tuple(v for pair in reversed(pw) for v in pair)
    return torch.nn.functional.pad(x, flat)

kernel_name = 'sequential_preLN__linear_kernel_hedgehog__dense_activation_mish__prompt'

def setup_inputs():

    _w = (lambda a: (lambda t: t.to(torch.bfloat16) if t.is_floating_point() else t)(torch.as_tensor(a)))
    def _A_setup():
        B, S, D, H = 1, 2048, 512, 32
        Dh = D // H
        return {
            "x": _w((lambda *s: torch.randn(*s, dtype=torch.bfloat16) * 0.05)(B, S, D)),
            "wqkv": _w((lambda *s: torch.randn(*s, dtype=torch.bfloat16) * 0.2)(D, 3 * D)),
            "w_phi": _w((lambda *s: torch.randn(*s, dtype=torch.bfloat16) * 0.2)(H, Dh, Dh) * (Dh ** -0.5)),
            "wo": _w((lambda *s: torch.randn(*s, dtype=torch.bfloat16) * 0.05)(D, D)),
        }
    _A_in = _A_setup()

    def _B_setup():
        B, S, D, F = 1, 2048, 512, 1792
        return {
            "x": _w((lambda *s: torch.randn(*s, dtype=torch.bfloat16) * 0.05)(B, S, D)),
            "w1": _w((lambda *s: torch.randn(*s, dtype=torch.bfloat16) * 1.6)(D, F) * (D ** -0.5)),
            "b1": _w((lambda *s: torch.randn(*s, dtype=torch.bfloat16) * 0.4)(F)),
            "w2": _w((lambda *s: torch.randn(*s, dtype=torch.bfloat16) * 0.1)(F, D) * (F ** -0.5)),
        }
    _B_in = _B_setup()

    return {
        "A_x": _A_in["x"],
        "A_wqkv": _A_in["wqkv"],
        "A_w_phi": _A_in["w_phi"],
        "A_wo": _A_in["wo"],
        "B_x": _B_in["x"],
        "B_w1": _B_in["w1"],
        "B_b1": _B_in["b1"],
        "B_w2": _B_in["w2"],
    }

def reference(A_x, A_wqkv, A_w_phi, A_wo, B_x, B_w1, B_b1, B_w2):
    def _A_ref(x, wqkv, w_phi, wo):
        B, S, D = x.shape
        H = 32; Dh = D // H
        qkv = (lambda x, *d: x.permute(*d))((x @ wqkv).reshape(B, S, 3, H, Dh), 2, 0, 3, 1, 4)
        q, k, v = qkv[0], qkv[1], qkv[2]
        pq = torch.einsum("bhsd,hdf->bhsf", q, w_phi)
        pk = torch.einsum("bhsd,hdf->bhsf", k, w_phi)
        phi_q = torch.concatenate([_softmax(pq, axis=-1), _softmax(-pq, axis=-1)], axis=-1)
        phi_k = torch.concatenate([_softmax(pk, axis=-1), _softmax(-pk, axis=-1)], axis=-1)
        kv = torch.einsum("bhsf,bhsd->bhfd", phi_k, v)
        z  = torch.einsum("bhsf->bhf", phi_k)
        num = torch.einsum("bhqf,bhfd->bhqd", phi_q, kv)
        den = torch.einsum("bhqf,bhf->bhq", phi_q, z)[..., None] + 1e-6
        o = num / den
        return (lambda x, *d: x.permute(*d))(o, 0, 2, 1, 3).reshape(B, S, D) @ wo

    def _B_ref(x, w1, b1, w2):
        h = torch.einsum("bsd,df->bsf", x, w1) + b1
        sp = torch.log1p(torch.exp(-torch.abs(h))) + torch.where(h > 0, h, torch.zeros_like(h))
        act = h * torch.tanh(sp)
        return torch.einsum("bsf,fd->bsd", act, w2)

    x = A_x
    h = x + _A_ref(_layernorm(x, axis=-1), A_wqkv, A_w_phi, A_wo)
    h2 = h + _B_ref(_layernorm(h, axis=-1), B_w1, B_b1, B_w2)
    return h2
```

```python
import re

_REG = re.compile(r"(?<![\w.])([vas])(?:(\d+)\b|\[(\d+):(\d+)\])")
TRANS = ("v_exp_f32", "v_log_f32", "v_rcp_f32", "v_rsq_f32", "v_sqrt_f32", "v_sin_f32", "v_cos_f32")
PASSES = {"v_mfma_f32_32x32x16_bf16": 8, "v_mfma_f32_16x16x32_bf16": 4, "v_mfma_f32_4x4x4_16b_bf16": 2}


def regs_of(text):
    out = []
    for m in _REG.finditer(text):
        k = m.group(1)
        if m.group(2) is not None:
            out.append((k, int(m.group(2))))
        else:
            out += [(k, i) for i in range(int(m.group(3)), int(m.group(4)) + 1)]
    if re.search(r"\bvcc(_lo|_hi)?\b", text):
        out.append(("x", "vcc"))
    if re.search(r"\bexec(_lo|_hi)?\b", text):
        out.append(("x", "exec"))
    if re.search(r"\bm0\b", text):
        out.append(("x", "m0"))
    return out


def split_ops(s):
    ops, depth, cur = [], 0, ""
    for ch in s:
        if ch in "[(":
            depth += 1
        if ch in "])":
            depth -= 1
        if ch == "," and depth == 0:
            ops.append(cur.strip())
            cur = ""
        else:
            cur += ch
    if cur.strip():
        ops.append(cur.strip())
    return ops


class Ins:
    __slots__ = ("text", "op", "kind", "reads", "writes", "tag", "srcc", "srcab", "dpp", "arg", "wide", "cost")

    def __init__(self, text, tag=None):
        self.text = text.strip()
        self.tag = tag
        self.srcc = self.srcab = ()
        self.dpp = False
        self.wide = False
        self.arg = None
        t = self.text
        if t.endswith(":"):
            self.op, self.kind, self.reads, self.writes = t, "label", (), ()
            return
        if t.startswith("@"):
            parts = t.split(None, 1)
            self.op, self.kind, self.reads, self.writes = parts[0], "pseudo", (), ()
            self.arg = parts[1] if len(parts) > 1 else None
            return
        if t.startswith(";") or t.startswith("."):
            self.op, self.kind, self.reads, self.writes = t, "meta", (), ()
            return
        parts = t.split(None, 1)
        op = self.op = parts[0]
        ops = split_ops(parts[1]) if len(parts) > 1 else []
        R = [regs_of(o) for o in ops]
        flat = lambda l: [r for x in l for r in x]
        base = re.sub(r"_(e32|e64|dpp|sdwa)$", "", op)
        if op.startswith("v_mfma"):
            self.kind = "mfma"
            self.writes, self.reads = R[0], flat(R[1:])
            self.srcab, self.srcc = R[1] + R[2], R[3]
        elif op.startswith("v_"):
            self.kind = "trans" if base in TRANS else "valu"
            self.dpp = op.endswith("_dpp")
            if base.startswith("v_permlane"):
                self.writes, self.reads = R[0] + R[1], R[0] + R[1]
            elif base in ("v_add_co_u32", "v_sub_co_u32", "v_addc_co_u32", "v_subb_co_u32"):
                self.writes, self.reads = R[0] + R[1], flat(R[2:])
            else:
                self.writes, self.reads = R[0], flat(R[1:])
                if base in ("v_fmac_f32", "v_dot2c_f32_bf16") or self.dpp or op.endswith("_sdwa") or base == "v_writelane_b32":
                    self.reads = self.reads + R[0]
            if base == "v_cndmask_b32" and len(ops) == 3:
                self.reads = self.reads + [("x", "vcc")]
        elif op.startswith("ds_read"):
            self.kind = "ds"
            self.writes, self.reads = R[0], flat(R[1:])
        elif op.startswith("ds_"):
            self.kind = "ds"
            self.writes, self.reads = [], flat(R)
        elif op.startswith("buffer_load") or op.startswith("global_load"):
            self.kind = "vm"
            if re.search(r"\blds\b", t):
                self.writes, self.reads = [], flat(R) + [("x", "m0")]
            else:
                self.writes, self.reads = R[0], flat(R[1:])
        elif op.startswith("buffer_store") or op.startswith("global_store"):
            self.kind = "vm"
            self.writes, self.reads = [], flat(R)
            self.wide = op.endswith("x4") or op.endswith("x3")
            self.arg = R[0] if op.startswith("buffer") else R[1]
        elif op.startswith("s_load") or op in ("s_memtime", "s_memrealtime"):
            self.kind = "smem"
            self.writes, self.reads = R[0], flat(R[1:])
        elif op.startswith("s_cmp") or op.startswith("s_bitcmp"):
            self.kind = "salu"
            self.writes, self.reads = [], flat(R)
        elif op in ("s_waitcnt", "s_barrier", "s_nop", "s_endpgm", "s_sleep", "s_setprio") or op.startswith("s_cbranch") or op == "s_branch":
            self.kind = "ctl"
            self.writes, self.reads = [], []
        elif op.startswith("s_"):
            self.kind = "salu"
            self.writes, self.reads = R[0], flat(R[1:])
            if "saveexec" in op:
                self.writes = self.writes + [("x", "exec")]
            if op in ("s_addk_i32", "s_mulk_i32"):
                self.reads = self.reads + R[0]
        else:
            raise ValueError("unknown instruction: " + t)


class Prog(list):
    def __call__(self, text, tag=None):
        for line in text.split("\n"):
            line = line.strip()
            if line:
                self.append(Ins(line, tag))
        return self

    def waitvm(self, tag):
        self.append(Ins("@waitvm " + tag))

    def waitlgkm(self, tag):
        self.append(Ins("@waitlgkm " + tag))


def insert_waits(prog):
    out = Prog()
    vm, lg = [], []
    seen = set()
    for ins in prog:
        need_vm = need_lg = None
        if ins.kind == "pseudo":
            if ins.op == "@waitvm":
                assert ins.arg in seen, "unknown tag " + ins.arg
                idx = [i for i, o in enumerate(vm) if o[1] == ins.arg]
                if idx:
                    need_vm = len(vm) - 1 - idx[-1]
            elif ins.op == "@waitlgkm":
                assert ins.arg in seen, "unknown tag " + ins.arg
                idx = [i for i, o in enumerate(lg) if o[1] == ins.arg]
                if idx:
                    need_lg = len(lg) - 1 - idx[-1]
            elif ins.op == "@vm_empty":
                vm = []
                continue
            elif ins.op == "@lgkm_empty":
                lg = []
                continue
            elif ins.op == "@raw_begin" or ins.op == "@raw_end":
                out.append(ins)
                continue
            else:
                out.append(ins)
                continue
        else:
            touched = set(ins.reads) | set(ins.writes)
            if touched:
                for i, o in enumerate(vm):
                    if touched & o[0]:
                        need_vm = len(vm) - 1 - i
                for i, o in enumerate(lg):
                    if touched & o[0]:
                        need_lg = len(lg) - 1 - i
        if need_lg is not None and any(o[2] for o in lg):
            need_lg = 0
        if need_vm is not None or need_lg is not None:
            w = []
            if need_vm is not None:
                need_vm = min(need_vm, 62)
                w.append(f"vmcnt({need_vm})")
                vm = vm[len(vm) - need_vm:] if need_vm else []
            if need_lg is not None:
                need_lg = min(need_lg, 14)
                w.append(f"lgkmcnt({need_lg})")
                lg = lg[len(lg) - need_lg:] if need_lg else []
            out.append(Ins("s_waitcnt " + " ".join(w)))
        if ins.kind == "pseudo":
            continue
        if ins.op == "s_waitcnt":
            m = re.search(r"vmcnt\((\d+)\)", ins.text)
            if m and ins.tag != "cond":
                n = int(m.group(1))
                vm = vm[len(vm) - n:] if n and n < len(vm) else ([] if n == 0 else vm)
            m = re.search(r"lgkmcnt\((\d+)\)", ins.text)
            if m and ins.tag != "cond":
                n = int(m.group(1))
                assert n == 0 or not any(o[2] for o in lg)
                lg = lg[len(lg) - n:] if n and n < len(lg) else ([] if n == 0 else lg)
        if ins.tag and ins.tag != "cond":
            seen.add(ins.tag)
        if ins.tag != "cond":
            if ins.kind == "vm":
                vm.append((set(ins.writes), ins.tag, False))
            elif ins.kind == "ds":
                lg.append((set(ins.writes), ins.tag, False))
            elif ins.kind == "smem":
                lg.append((set(ins.writes), ins.tag, True))
        out.append(ins)
    return out


def _states(ins):
    if ins.kind in ("label", "pseudo", "meta"):
        return 0
    if ins.op == "s_nop":
        return int(ins.text.split()[1], 0) + 1
    return 1


def _need(prev, cur):
    n = 0
    pw, cr, cw = set(prev.writes), set(cur.reads), set(cur.writes)
    isv = lambda s: {r for r in s if r[0] in "va"}
    iss = lambda s: {r for r in s if r[0] == "s" or r == ("x", "vcc")}
    pvalu = prev.kind in ("valu", "trans")
    cvalu = cur.kind in ("valu", "trans")
    if pvalu:
        w = isv(pw)
        if cur.kind == "mfma" and w & cr:
            n = max(n, 2)
        if cvalu and w & cr:
            if cur.dpp or cur.op.startswith("v_permlane"):
                n = max(n, 2)
            if cur.op.startswith("v_readlane") or cur.op.startswith("v_readfirstlane"):
                n = max(n, 1)
            if prev.kind == "trans" and cur.kind != "trans":
                n = max(n, 1)
            if prev.op.endswith("_sdwa") or "op_sel" in prev.text:
                n = max(n, 1)
        s = iss(pw)
        if s & cr:
            if cvalu:
                n = max(n, 4 if cur.op.startswith(("v_readlane", "v_writelane")) else 2)
            if cur.kind == "vm":
                n = max(n, 5)
            if cur.kind in ("salu", "smem"):
                n = max(n, 1)
        if ("x", "exec") in pw:
            n = max(n, 5)
    if prev.kind == "mfma":
        p = PASSES[prev.op]
        i = {2: 0, 4: 1, 8: 2}[p]
        if cur.kind == "mfma":
            if pw & set(cur.srcab):
                n = max(n, (5, 8, 12)[i])
            if pw & set(cur.srcc):
                same = list(prev.writes) == list(cur.srcc) and prev.op == cur.op
                n = max(n, (2, 0, 0)[i] if same else (4, 6, 10)[i])
            elif pw & cw:
                n = max(n, (4, 6, 10)[i])
        elif cur.kind in ("valu", "trans", "vm", "ds") and pw & (cr | cw):
            n = max(n, (5, 8, 12)[i])
        if cvalu and set(prev.srcc) & cw:
            n = max(n, (1, 3, 7)[i])
    if prev.kind == "vm" and prev.wide and set(prev.arg) & cw:
        n = max(n, 2)
    if prev.kind == "salu" and ("x", "m0") in pw and cur.kind == "vm" and ("x", "m0") in cr:
        n = max(n, 1)
    return n


def insert_nops(prog, window=14):
    out = Prog()
    for ins in prog:
        if ins.kind not in ("label", "pseudo", "meta", "ctl"):
            dist, need = 0, 0
            for prev in reversed(out):
                if dist >= window:
                    break
                if prev.kind not in ("label", "pseudo", "meta", "ctl"):
                    need = max(need, _need(prev, ins) - dist)
                dist += _states(prev)
            while need > 0:
                k = min(need, 16)
                out.append(Ins(f"s_nop {k-1}"))
                need -= k
        out.append(ins)
    return out


def render(prog):
    lines = []
    for ins in prog:
        if ins.kind == "pseudo":
            continue
        lines.append(ins.text if ins.kind == "label" else "    " + ins.text)
    return "\n".join(lines)


class RegFile:
    def __init__(self, kind, n, first=0):
        self.kind, self.n = kind, n
        self.used = [i < first for i in range(n)]
        self.high = first

    def alloc(self, cnt=1, align=None):
        align = align or (1 if cnt == 1 else 2 if cnt == 2 else 4)
        for b in range(0, self.n - cnt + 1, align):
            if not any(self.used[b:b + cnt]):
                for i in range(b, b + cnt):
                    self.used[i] = True
                self.high = max(self.high, b + cnt)
                return Reg(self.kind, b, cnt, self)
        raise RuntimeError(f"out of {self.kind} registers (need {cnt})")


class Reg:
    def __init__(self, kind, base, cnt, rf=None):
        self.kind, self.base, self.cnt, self.rf = kind, base, cnt, rf

    def __str__(self):
        return f"{self.kind}{self.base}" if self.cnt == 1 else f"{self.kind}[{self.base}:{self.base+self.cnt-1}]"

    __repr__ = __str__

    def __getitem__(self, i):
        if isinstance(i, slice):
            a, b = i.start or 0, self.cnt if i.stop is None else i.stop
            assert 0 <= a < b <= self.cnt, (a, b, self.cnt)
            return Reg(self.kind, self.base + a, b - a)
        assert 0 <= i < self.cnt, (i, self.cnt)
        return Reg(self.kind, self.base + i, 1)

    def free(self):
        for i in range(self.base, self.base + self.cnt):
            assert self.rf.used[i]
            self.rf.used[i] = False


def interleave(main, fill, per):
    out = Prog()
    fi, acc = 0, 0.0
    for ins in main:
        out.append(ins)
        if ins.kind == "mfma" and PASSES[ins.op] == 8:
            acc += per
            while acc >= 1.0 and fi < len(fill):
                f = fill[fi]
                out.append(f)
                fi += 1
                if f.kind not in ("pseudo", "meta"):
                    acc -= 2.0 if f.kind == "trans" else 1.0
    out.extend(fill[fi:])
    return out
```

```python
import sys
from asmgen import *

NAME = "sequential_preLN__linear_kernel_hedgehog__dense_activation_mish__prompt"
MF32 = "v_mfma_f32_32x32x16_bf16"
MF16 = "v_mfma_f32_16x16x32_bf16"
MF4 = "v_mfma_f32_4x4x4_16b_bf16"

WS_EPOCH = 0
WS_P1 = 0x100000
WS_P2 = 0x300000
WS_RB = 0x400000
RB_SIZE = 0x120000
RB_O, RB_H, RB_ACT, RB_PART, RB_ST2, RB_FL = 0, 0x20000, 0x40000, 0xB0000, 0x110000, 0x114000
FL_SAFE = 0x2000
WS_STAMP = 0x1800000
L_WK, L_WV, L_WQ, L_XS = 0, 32768, 65536, 98304
L_PHI, L_VT, L_KVA, L_CS, L_RED = 0, 16384, 24576, 27648, 0
L_W1A, L_W1B, L_W1C = 32768, 98304, 131072
L_OUT = 98304
LOG2E = 0x3fb8aa3b
TAG_STEP = 0x9E3779B9


def w2slot(z):
    return 147456 + z * 4096 if z < 4 else (z - 4) * 4096 if z < 12 else 32768 + (z - 12) * 4096


class Gen:
    def __init__(self, stamps=False, LA=2, opt=None):
        self.K = Prog()
        self.V = RegFile("v", 256, first=1)
        self.A = RegFile("a", 256)
        self.S = RegFile("s", 100, first=44)
        self.stamps = stamps
        self.LA = LA
        self.opt = opt or {}
        self.nlabel = 0
        self.stamp_names = []

    def label(self, base):
        self.nlabel += 1
        return f"L_{base}_{self.nlabel}"

    def stamp(self, name):
        if not self.stamps:
            return
        i = len(self.stamp_names)
        self.stamp_names.append(name)
        self.K(f"""s_memrealtime {self.sStamp}
        s_waitcnt lgkmcnt(0)
        v_writelane_b32 {self.vStamp}, {self.sStamp[0]}, {i}""")

    def dma(self, vaddr, srd, soff, m0=None, imm=0, tag=None, P=None):
        P = self.K if P is None else P
        if m0 is not None:
            P(m0)
        off = f" offset:{imm}" if imm else ""
        P(f"buffer_load_dwordx4 {vaddr}, {srd}, {soff} offen{off} lds", tag)

    def trread(self, dst, vaddr, off0, off1, P=None, tag=None):
        P = self.K if P is None else P
        assert off1 < 65536 and off0 < 65536
        P(f"ds_read_b64_tr_b16 {dst[0:2]}, {vaddr} offset:{off0}", tag)
        P(f"ds_read_b64_tr_b16 {dst[2:4]}, {vaddr} offset:{off1}", tag)

    def half_add(self, x, tmp, P=None):
        P = self.K if P is None else P
        P(f"""v_mov_b32 {tmp}, {x}
        v_permlane32_swap_b32 {x}, {tmp}
        v_add_f32 {x}, {x}, {tmp}""")

    def softmax(self, Pr, out, vC, t, P=None):
        P = self.K if P is None else P
        P(f"v_max3_f32 {t[0]}, {Pr[0]}, {Pr[1]}, {Pr[2]}")
        P(f"v_max3_f32 {t[1]}, {Pr[3]}, {Pr[4]}, {Pr[5]}")
        P(f"v_max3_f32 {t[0]}, {t[0]}, {Pr[6]}, {Pr[7]}")
        P(f"v_max3_f32 {t[1]}, {t[1]}, {Pr[8]}, {Pr[9]}")
        P(f"v_max3_f32 {t[0]}, {t[0]}, {Pr[10]}, {Pr[11]}")
        P(f"v_max3_f32 {t[1]}, {t[1]}, {Pr[12]}, {Pr[13]}")
        P(f"v_max3_f32 {t[0]}, {t[0]}, {Pr[14]}, {Pr[15]}")
        P(f"v_max_f32 {t[0]}, {t[0]}, {t[1]}")
        P(f"v_mul_f32 {t[0]}, {t[0]}, {vC}")
        for r in range(16):
            P(f"v_fma_f32 {Pr[r]}, {Pr[r]}, {vC}, -{t[0]}")
        for r in range(16):
            P(f"v_exp_f32 {Pr[r]}, {Pr[r]}")
        for q in range(4):
            P(f"v_add_f32 {t[q]}, {Pr[q]}, {Pr[q+4]}")
        for r in range(8, 16):
            P(f"v_add_f32 {t[r%4]}, {t[r%4]}, {Pr[r]}")
        P(f"""v_add_f32 {t[0]}, {t[0]}, {t[1]}
        v_add_f32 {t[2]}, {t[2]}, {t[3]}
        v_add_f32 {t[0]}, {t[0]}, {t[2]}
        v_rcp_f32 {t[0]}, {t[0]}""")
        for r in range(16):
            P(f"v_mul_f32 {Pr[r]}, {Pr[r]}, {t[0]}")
        for r in range(8):
            P(f"v_cvt_pk_bf16_f32 {out[r]}, {Pr[2*r]}, {Pr[2*r+1]}")

    def hilo_pair(self, dst, x, tmp, P=None):
        P = self.K if P is None else P
        P(f"""v_cvt_pk_bf16_f32 {tmp}, {x}, {x}
        v_and_b32 {tmp}, 0xffff0000, {tmp}
        v_sub_f32 {tmp}, {x}, {tmp}
        v_cvt_pk_bf16_f32 {dst}, {x}, {tmp}""")

    def set_flag(self, sAddr, safe=False, P=None):
        P = self.K if P is None else P
        if safe:
            P(f"buffer_store_dword {self.vTag}, {self.vSafe}, {self.sWS}, {sAddr} offen sc1")
        else:
            P(f"buffer_store_dword {self.vTag}, {self.vZero}, {self.sWS}, {sAddr} offen")

    def poll_flags(self, vA, sBase, pending):
        K = self.K
        L0, L1, Ld = self.label("pf"), self.label("ps"), self.label("pd")
        t0, t1, t2 = self.V.alloc(), self.V.alloc(), self.V.alloc()
        K(f"s_mov_b32 {self.sCnt}, 24")
        K(f"""{L0}:
        buffer_load_dword {t0}, {vA}, {self.sWS}, {sBase} offen sc1
        s_waitcnt vmcnt(0)
        v_cmp_ne_u32 vcc, {self.sTag}, {t0}
        s_cbranch_vccz {Ld}
        s_sub_u32 {self.sCnt}, {self.sCnt}, 1
        s_cbranch_scc0 {L0}""")
        for p in pending:
            self.set_flag(p, safe=True)
        K(f"""v_add_u32 {t2}, {FL_SAFE}, {vA}
        s_mov_b32 {self.sCnt}, 40000
        {L1}:
        buffer_load_dword {t0}, {vA}, {self.sWS}, {sBase} offen sc1
        buffer_load_dword {t1}, {t2}, {self.sWS}, {sBase} offen sc1
        s_waitcnt vmcnt(0)
        v_cmp_ne_u32 vcc, {self.sTag}, {t0}
        v_cmp_ne_u32 {self.sPair}, {self.sTag}, {t1}
        s_and_b64 vcc, vcc, {self.sPair}
        s_cbranch_scc0 {Ld}
        s_sub_u32 {self.sCnt}, {self.sCnt}, 1
        s_cbranch_scc0 {L1}
        {Ld}:""")
        t0.free(), t1.free(), t2.free()

    def prologue(self):
        K, V, S = self.K, self.V, self.S
        self.sX, self.sW, self.sPHI, self.sWO = (Reg("s", b, 4) for b in (8, 12, 16, 20))
        self.sW1, self.sB1, self.sW2, self.sOUT, self.sWS = (Reg("s", b, 4) for b in (24, 28, 32, 36, 40))
        K("s_cmp_ge_u32 s2, 256\ns_cbranch_scc1 L_end")
        if self.stamps:
            self.sStamp = S.alloc(2)
            self.vStamp = V.alloc()
            K(f"v_mov_b32 {self.vStamp}, 0")
        self.stamp("start")
        for srd, off in ((self.sX, 0), (self.sW, 8), (self.sWS, 80), (self.sPHI, 16), (self.sWO, 24), (self.sW1, 40),
                         (self.sB1, 48), (self.sW2, 56), (self.sOUT, 64)):
            K(f"s_load_dwordx2 {srd[0:2]}, s[0:1], {off}")
        for srd, size in ((self.sX, 2097152), (self.sW, 1572864), (self.sWS, 268435456), (self.sPHI, 16384), (self.sWO, 524288),
                          (self.sW1, 1835008), (self.sB1, 3584), (self.sW2, 1835008), (self.sOUT, 2097152)):
            K(f"s_mov_b32 {srd[2]}, {size}\ns_mov_b32 {srd[3]}, 0x20000")
        names = "sV sT sRB sRho sT0 sT1 sT2 sT3 sCnt sTag sRBB sXrow sM0x sIres sG sQ".split()
        for nm in names:
            setattr(self, nm, S.alloc())
        self.sPair = S.alloc(2)
        self.sChW = S.alloc(8, 1)
        self.vL, self.vN, self.vG = V.alloc(), V.alloc(), V.alloc()
        self.vZero, self.vTag, self.vSafe = V.alloc(), V.alloc(), V.alloc()
        t = V.alloc()
        K(f"""v_lshrrev_b32 {t}, 6, v0
        v_and_b32 {self.vL}, 63, v0
        v_readfirstlane_b32 {self.sV}, {t}
        v_and_b32 {self.vN}, 31, v0
        v_lshrrev_b32 {self.vG}, 5, {self.vL}
        v_mov_b32 {self.vZero}, 0
        v_mov_b32 {self.vSafe}, {FL_SAFE}
        s_lshr_b32 {self.sT}, s2, 3
        s_and_b32 {self.sT}, {self.sT}, 15
        s_and_b32 {self.sT0}, s2, 7
        s_lshr_b32 {self.sT1}, s2, 7
        s_lshl_b32 {self.sRB}, {self.sT0}, 1
        s_add_u32 {self.sRB}, {self.sRB}, {self.sT1}
        s_and_b32 {self.sRho}, {self.sT}, 1
        s_lshl_b32 {self.sRho}, {self.sRho}, 1
        s_add_u32 {self.sRho}, {self.sRho}, {self.sT1}
        s_lshl_b32 {self.sRho}, {self.sRho}, 1
        s_lshr_b32 {self.sT1}, {self.sT}, 1
        s_add_u32 {self.sRho}, {self.sRho}, {self.sT1}
        s_add_u32 {self.sRho}, {self.sRho}, {self.sT0}
        s_and_b32 {self.sRho}, {self.sRho}, 7
        s_lshl_b32 {self.sXrow}, {self.sRB}, 17
        s_lshl_b32 {self.sT0}, {self.sV}, 15
        s_add_u32 {self.sXrow}, {self.sXrow}, {self.sT0}
        s_lshl_b32 {self.sM0x}, {self.sV}, 14
        s_add_u32 {self.sM0x}, {self.sM0x}, {L_XS}
        s_mul_i32 {self.sRBB}, {self.sRB}, {RB_SIZE}
        s_add_u32 {self.sRBB}, {self.sRBB}, {WS_RB}
        s_sub_u32 {self.sIres}, {self.sT}, {self.sRho}
        s_and_b32 {self.sIres}, {self.sIres}, 7
        s_lshr_b32 {self.sG}, {self.sT}, 2
        s_and_b32 {self.sQ}, {self.sT}, 3
        s_mul_i32 {self.sT0}, {self.sV}, {16*3072}
        s_lshl_b32 {self.sT1}, {self.sT}, 6
        s_add_u32 {self.sT0}, {self.sT0}, {self.sT1}""")
        for i in range(8):
            K(f"""s_add_u32 {self.sT1}, {self.sRho}, {i}
            s_and_b32 {self.sT1}, {self.sT1}, 7
            s_mul_i32 {self.sT1}, {self.sT1}, {64*3072}
            s_add_u32 {self.sChW[i]}, {self.sT1}, {self.sT0}""")
        self.vXa = V.alloc(4)
        t2, t3 = V.alloc(), V.alloc()
        K(f"""v_lshrrev_b32 {t}, 3, {self.vL}
        v_and_b32 {t2}, 7, {self.vL}
        v_lshrrev_b32 {t3}, 1, {t}
        v_xor_b32 {t2}, {t2}, {t3}
        v_lshlrev_b32 {t}, 10, {t}
        v_lshl_add_u32 {self.vXa[0]}, {t2}, 4, {t}
        v_xor_b32 {t2}, 4, {t2}
        v_lshl_add_u32 {self.vXa[1]}, {t2}, 4, {t}
        v_add_u32 {self.vXa[2]}, {2*7168}, {self.vXa[0]}
        v_add_u32 {self.vXa[3]}, {3*7168}, {self.vXa[1]}
        v_add_u32 {self.vXa[1]}, {7168}, {self.vXa[1]}""")
        self.vWa = V.alloc()
        K(f"""v_lshrrev_b32 {t}, 2, {self.vL}
        v_mul_u32_u24 {t}, 3072, {t}
        v_and_b32 {t2}, 3, {self.vL}
        v_lshl_add_u32 {self.vWa}, {t2}, 4, {t}""")
        self.vL16 = V.alloc()
        K(f"v_lshlrev_b32 {self.vL16}, 4, {self.vL}")
        K("s_waitcnt lgkmcnt(0)")
        sE = S.alloc()
        self.sE = sE
        K(f"s_load_dword {sE}, {self.sWS[0:2]}, {WS_EPOCH}")
        t.free(), t2.free(), t3.free()

    def batch_xk(self, i):
        K = self.K
        K(f"""s_add_u32 {self.sT0}, {self.sRho}, {i}
        s_and_b32 {self.sT0}, {self.sT0}, 7
        s_lshl_b32 {self.sT0}, {self.sT0}, 7
        s_add_u32 {self.sT0}, {self.sT0}, {self.sXrow}""")
        self.wunit(L_WK, 1024, i, f"xk{i}")
        for u in range(4):
            self.dma(self.vXa[u], self.sX, self.sT0, m0=f"s_add_u32 m0, {self.sM0x}, {(i%4)*4096}" if u == 0 else None,
                     imm=u * 1024, tag=f"xk{i}")

    def wunit(self, lds, part, i, tag):
        K = self.K
        K(f"""s_add_u32 {self.sT1}, {self.sChW[i]}, {part}
        s_lshl_b32 {self.sT2}, {self.sV}, 10""")
        self.dma(self.vWa, self.sW, self.sT1, m0=f"s_add_u32 m0, {self.sT2}, {lds + i*4096}", tag=tag)

    def phase_a(self):
        K, V, A, S = self.K, self.V, self.A, self.S
        LA = self.LA
        self.X = A.alloc(128)
        self.batch_xk(0)
        K(f"""s_lshl_b32 {self.sT1}, {self.sT}, 10
        s_lshl_b32 {self.sT2}, {self.sV}, 10""")
        self.dma(self.vL16, self.sPHI, self.sT1, m0=f"s_add_u32 m0, {self.sT2}, {L_WQ}", tag="xk0")
        t, t2, t3 = V.alloc(), V.alloc(), V.alloc()
        junk = V.alloc()
        K(f"""v_and_b32 {t}, 15, {self.vL}
        v_lshlrev_b32 {t}, 7, {t}
        s_add_u32 {self.sT1}, {self.sRBB}, {RB_FL}
        buffer_load_dword {junk}, {t}, {self.sWS}, {self.sT1} offen sc1""")
        for i in range(1, LA):
            self.batch_xk(i)
        self.vXr = V.alloc(4)
        K(f"""v_lshrrev_b32 {t}, 1, {self.vN}
        v_and_b32 {t}, 7, {t}
        v_xor_b32 {t}, {t}, {self.vG}
        v_lshlrev_b32 {t2}, 7, {self.vN}""")
        for s in range(4):
            K(f"""v_xor_b32 {t3}, {2*s}, {t}
            v_lshl_add_u32 {t3}, {t3}, 4, {t2}
            v_add_u32 {self.vXr[s]}, {self.sM0x}, {t3}""")
        self.vRes = V.alloc(2)
        self.sR, self.sKH = S.alloc(), S.alloc()
        K(f"""s_lshr_b32 {self.sR}, {self.sT}, 3
        s_lshl_b32 {self.sR}, {self.sR}, 1
        s_and_b32 {self.sT0}, {self.sV}, 1
        s_add_u32 {self.sR}, {self.sR}, {self.sT0}
        s_lshr_b32 {self.sKH}, {self.sV}, 1
        s_lshl_b32 {self.sT0}, {self.sR}, 14
        s_and_b32 {self.sT1}, {self.sIres}, 3
        s_lshl_b32 {self.sT1}, {self.sT1}, 12
        s_add_u32 {self.sT0}, {self.sT0}, {self.sT1}
        s_add_u32 {self.sT0}, {self.sT0}, {L_XS}
        s_lshl_b32 {self.sT1}, {self.sKH}, 2""")
        for s in range(2):
            K(f"""v_xor_b32 {t3}, {self.sT1}, {t}
            v_xor_b32 {t3}, {2*s}, {t3}
            v_lshl_add_u32 {t3}, {t3}, 4, {t2}
            v_add_u32 {self.vRes[s]}, {self.sT0}, {t3}""")
        self.xres = V.alloc(8)
        self.vH16, self.vR, self.vC = V.alloc(), V.alloc(), V.alloc()
        K(f"""v_bfe_u32 {self.vH16}, {self.vL}, 4, 1
        v_bfe_u32 {self.vR}, {self.vL}, 2, 2
        v_and_b32 {self.vC}, 3, {self.vL}""")
        vWr, vWv, vPh = V.alloc(), V.alloc(), V.alloc()
        K(f"""v_lshl_add_u32 {t}, {self.vG}, 3, {self.vR}
        v_lshlrev_b32 {t}, 6, {t}
        v_lshl_add_u32 {t2}, {self.vH16}, 2, {self.vC}
        v_lshl_add_u32 {vWr}, {t2}, 3, {t}
        v_and_b32 {t2}, 1, {self.vC}
        v_lshlrev_b32 {t2}, 1, {t2}
        v_add_u32 {t2}, {t2}, {self.vH16}
        v_lshlrev_b32 {t2}, 1, {t2}
        v_lshrrev_b32 {t3}, 1, {self.vC}
        v_add_u32 {t2}, {t2}, {t3}
        v_lshl_add_u32 {vWv}, {t2}, 3, {t}
        v_lshl_add_u32 {t}, {self.vG}, 2, {self.vR}
        v_lshlrev_b32 {t}, 5, {t}
        v_lshl_add_u32 {t2}, {self.vH16}, 1, {t3}
        v_lshl_add_u32 {vPh}, {t2}, 3, {t}
        s_lshl_b32 {self.sT2}, {self.sV}, 10
        s_add_u32 {self.sT2}, {self.sT2}, {L_WQ}
        v_add_u32 {vPh}, {self.sT2}, {vPh}""")
        vWq = V.alloc()
        K(f"v_add_u32 {vWq}, {L_WQ}, {vWr}")
        self.sel16 = V.alloc(4)
        K(f"""v_bfe_u32 {t}, {self.vL}, 2, 1
        v_cmp_eq_u32 vcc, {t}, {self.vH16}
        v_mov_b32 {t2}, 0x3f803f80
        v_cndmask_b32 {self.sel16[0]}, 0, {t2}, vcc
        v_cndmask_b32 {self.sel16[1]}, 0, {t2}, vcc
        v_cndmask_b32 {self.sel16[2]}, 0, {t2}, vcc
        v_cndmask_b32 {self.sel16[3]}, 0, {t2}, vcc""")
        vNeg = V.alloc()
        K(f"""v_lshlrev_b32 {vNeg}, 31, {t}
        v_lshrrev_b32 {t}, 16, {vNeg}
        v_or_b32 {vNeg}, {vNeg}, {t}""")
        self.augA, self.augB = V.alloc(4), V.alloc(4)
        for q in range(1, 4):
            K(f"v_mov_b32 {self.augA[q]}, 0\nv_mov_b32 {self.augB[q]}, 0")
        K(f"""s_add_u32 {self.sTag}, {self.sE}, {TAG_STEP}
        v_mov_b32 {self.vTag}, {self.sTag}""")

        Wb = [V.alloc(16), V.alloc(16)]
        acc = V.alloc(16)
        sm, sq0, sq1, cs = V.alloc(4), V.alloc(4), V.alloc(4), V.alloc(4)
        phiA = V.alloc(8)
        X = self.X
        rest = [("v", i) for i in range(8)] + [("q", i) for i in range(8)]

        def mfmas(i):
            for s in range(4):
                ks = 4 * i + s
                xf, wf = X[4 * ks:4 * ks + 4], Wb[i & 1][4 * s:4 * s + 4]
                c0 = lambda r: "0" if ks == 0 else str(r)
                K(f"""{MF32} {acc}, {wf}, {xf}, {c0(acc)}
                {MF16} {sm}, {self.sel16}, {xf}, {c0(sm)}
                {MF4} {sq0}, {xf[0:2]}, {xf[0:2]}, {c0(sq0)}
                {MF4} {sq1}, {xf[2:4]}, {xf[2:4]}, {c0(sq1)}
                {MF16} {cs}, {self.sel16}, {wf}, {c0(cs)}""")

        self.stamp("issued")
        for i in range(8):
            K.waitvm(f"xk{i}")
            K("s_barrier")
            if i == 0:
                self.stamp("chunk0")
                for a in range(2):
                    self.trread(phiA[4 * a:4 * a + 4], vPh, a * 512, a * 512 + 256)
            for s in range(4):
                ks = 4 * i + s
                K(f"ds_read_b128 {X[4*ks:4*ks+4]}, {self.vXr[s]} offset:{(i%4)*4096}", f"rd{i}")
                self.trread(Wb[i & 1][4 * s:4 * s + 4], vWr, L_WK + ks * 1024, L_WK + ks * 1024 + 256, tag=f"rd{i}")
            Ls = self.label("res")
            K(f"s_cmp_lg_u32 {self.sIres}, {i}\ns_cbranch_scc1 {Ls}")
            K(f"""ds_read_b128 {self.xres[0:4]}, {self.vRes[0]}
            ds_read_b128 {self.xres[4:8]}, {self.vRes[1]}
            s_waitcnt lgkmcnt(0)""", "cond")
            K(f"{Ls}:")
            if i > 0:
                K.waitlgkm(f"rd{i-1}")
            if i + LA < 8:
                self.batch_xk(i + LA)
            else:
                n = -(-len(rest) // (8 - i)) if i < 7 else len(rest)
                n = min(n, self.opt.get("rest_per_iter", 8))
                for kind, c in rest[:n]:
                    self.wunit(L_WV if kind == "v" else L_WQ, 2048 if kind == "v" else 0, c, f"{kind}{c//4}")
                rest = rest[n:]
            if i > 0:
                mfmas(i - 1)
            if i == 1:
                for q in range(8):
                    K(f"v_xor_b32 {phiA[q]}, {phiA[q]}, {vNeg}")
        for kind, c in rest:
            self.wunit(L_WV if kind == "v" else L_WQ, 2048 if kind == "v" else 0, c, f"{kind}{c//4}")
        mfmas(7)
        self.stamp("kgemm")
        vNeg.free(), vPh.free(), junk.free(), self.vXa.free(), self.vXr.free(), self.vRes.free()

        self.vRstd, self.vCl = V.alloc(), V.alloc()
        K(f"""v_add_f32 {sq0[0]}, {sq0[0]}, {sq1[0]}
        v_add_f32 {sq0[1]}, {sq0[1]}, {sq1[1]}
        v_add_f32 {sq0[2]}, {sq0[2]}, {sq1[2]}
        v_add_f32 {sq0[3]}, {sq0[3]}, {sq1[3]}
        v_cmp_eq_u32 vcc, 1, {self.vC}
        v_cndmask_b32 {sq0[0]}, {sq0[0]}, {sq0[1]}, vcc
        v_cmp_eq_u32 vcc, 2, {self.vC}
        v_cndmask_b32 {sq0[0]}, {sq0[0]}, {sq0[2]}, vcc
        v_cmp_eq_u32 vcc, 3, {self.vC}
        v_cndmask_b32 {sq0[0]}, {sq0[0]}, {sq0[3]}, vcc""")
        self.half_add(sq0[0], t)
        self.ln_scalars(sm[0], sq0[0], self.vRstd, None, t, t2, t3)
        K(f"v_mul_f32 {self.vCl}, {LOG2E}, {self.vRstd}")

        def finish(cs_, dst):
            self.hilo_pair(self.augA[0], cs_[0], t)
            K(f"{MF32} {acc}, {self.augA}, {self.augB}, {acc}")
            if dst is not None:
                for r in range(8):
                    K(f"v_cvt_pk_bf16_f32 {dst[r]}, {acc[2*r]}, {acc[2*r+1]}")

        kb = V.alloc(8)
        P0, P1 = V.alloc(16), V.alloc(16)
        tt = V.alloc(4)
        phi = V.alloc(16)

        def feature_map():
            K(f"""{MF32} {P0}, {phiA[0:4]}, {kb[0:4]}, 0
            {MF32} {P1}, {phiA[4:8]}, {kb[4:8]}, 0""")
            self.softmax(P0, phi[0:8], self.vCl, tt)
            self.softmax(P1, phi[8:16], self.vCl, tt)

        def gemm(vaddr, base, lo, hi):
            nb = 8
            bufs = [Wb[b // 4][4 * (b % 4):4 * (b % 4) + 4] for b in range(nb)]
            pre = 4
            for ks in range(lo, min(lo + pre, hi)):
                self.trread(bufs[ks % nb], vaddr, base + ks * 1024, base + ks * 1024 + 256)
            for ks in range(lo, hi):
                if ks + pre < hi:
                    k2 = ks + pre
                    self.trread(bufs[k2 % nb], vaddr, base + k2 * 1024, base + k2 * 1024 + 256)
                c0 = lambda r: "0" if ks == 0 else str(r)
                K(f"""{MF32} {acc}, {bufs[ks%nb]}, {X[4*ks:4*ks+4]}, {c0(acc)}
                {MF16} {cs}, {self.sel16}, {bufs[ks%nb]}, {c0(cs)}""")

        finish(cs, kb)
        feature_map()
        self.stamp("ksoft")
        K.waitvm("v0")
        K("s_barrier")
        vPw = V.alloc()
        K(f"""v_lshl_add_u32 {t}, {self.vG}, 7, {self.vN}
        s_lshl_b32 {self.sT0}, {self.sV}, 5
        v_add_u32 {t}, {self.sT0}, {t}
        v_lshlrev_b32 {vPw}, 5, {t}""")
        for a in range(2):
            K(f"""ds_write_b128 {vPw}, {phi[8*a:8*a+4]} offset:{L_PHI + a*8192}
            ds_write_b128 {vPw}, {phi[8*a+4:8*a+8]} offset:{L_PHI + a*8192 + 16}""")
        self.issue_wo()
        gemm(vWv, L_WV, 0, 16)
        K.waitvm("v1")
        K("s_barrier")
        gemm(vWv, L_WV, 16, 32)
        finish(cs, None)
        for r in range(16):
            K(f"v_mul_f32 {acc[r]}, {acc[r]}, {self.vRstd}")
        for r in range(8):
            K(f"v_cvt_pk_bf16_f32 {kb[r]}, {acc[2*r]}, {acc[2*r+1]}")
        K(f"""ds_write_b128 {vPw}, {kb[0:4]} offset:{L_VT}
        ds_write_b128 {vPw}, {kb[4:8]} offset:{L_VT + 16}""")
        vPw.free(), vWv.free()
        vKa, vKb = V.alloc(), V.alloc()
        K(f"""v_lshrrev_b32 {t}, 2, {self.vL}
        v_lshlrev_b32 {t}, 5, {t}
        v_lshl_add_u32 {t}, {self.vC}, 3, {t}
        s_lshl_b32 {self.sT0}, {self.sV}, 12
        v_add_u32 {vKa}, {self.sT0}, {t}
        s_lshl_b32 {self.sT0}, {self.sKH}, 12
        v_add_u32 {vKb}, {self.sT0}, {t}""")
        ones = V.alloc(4)
        for q in range(4):
            K(f"v_mov_b32 {ones[q]}, 0x3f803f80")
        K("s_waitcnt lgkmcnt(0)\ns_barrier")
        self.stamp("vgemm")
        for ks in range(4):
            self.trread(Wb[0][4 * ks:4 * ks + 4], vKa, L_PHI + ks * 1024, L_PHI + ks * 1024 + 512)
            self.trread(Wb[1][4 * ks:4 * ks + 4], vKb, L_VT + ks * 1024, L_VT + ks * 1024 + 512)
        g = V.alloc(8)
        for ks in range(4):
            c0 = lambda r: "0" if ks == 0 else str(r)
            K(f"""{MF16} {sq0}, {Wb[0][4*ks:4*ks+4]}, {Wb[1][4*ks:4*ks+4]}, {c0(sq0)}
            {MF16} {sq1}, {Wb[0][4*ks:4*ks+4]}, {ones}, {c0(sq1)}""")
        vP1w, vP1r = V.alloc(), V.alloc()
        sP1w, sP1r, sP2 = S.alloc(), S.alloc(), S.alloc()
        K(f"""v_lshrrev_b32 {t}, 2, {self.vL}
        v_lshlrev_b32 {t2}, 4, {self.vC}
        v_lshl_add_u32 {vP1w}, {t}, 11, {t2}
        v_lshl_add_u32 {vP1r}, {t}, 7, {t2}
        s_lshl_b32 {self.sT0}, {self.sT}, 2
        s_add_u32 {self.sT0}, {self.sT0}, {self.sV}
        s_lshl_b32 {sP2}, {self.sT0}, 10
        s_add_u32 {sP2}, {sP2}, {WS_P2}
        s_lshl_b32 {self.sT0}, {self.sT0}, 15
        s_add_u32 {self.sT0}, {self.sT0}, {WS_P1}
        s_lshl_b32 {self.sT1}, {self.sRB}, 7
        s_add_u32 {sP1w}, {self.sT0}, {self.sT1}
        s_lshl_b32 {self.sT1}, {self.sRB}, 11
        s_add_u32 {sP1r}, {self.sT0}, {self.sT1}
        v_mov_b32 {g[3]}, {self.sTag}
        v_mov_b32 {g[7]}, {self.sTag}
        v_mov_b32 {g[6]}, 0
        v_cmp_eq_u32 vcc, 1, {self.vC}
        v_cndmask_b32 {g[5]}, {sq1[0]}, {sq1[1]}, vcc
        v_cmp_eq_u32 vcc, 2, {self.vC}
        v_cndmask_b32 {g[5]}, {g[5]}, {sq1[2]}, vcc
        v_cmp_eq_u32 vcc, 3, {self.vC}
        v_cndmask_b32 {g[5]}, {g[5]}, {sq1[3]}, vcc
        v_mov_b32 {g[0]}, {sq0[0]}
        v_mov_b32 {g[1]}, {sq0[1]}
        v_mov_b32 {g[2]}, {sq0[2]}
        v_mov_b32 {g[4]}, {sq0[3]}
        buffer_store_dwordx4 {g[0:4]}, {vP1w}, {self.sWS}, {sP1w} offen sc1
        buffer_store_dwordx4 {g[4:8]}, {vP1w}, {self.sWS}, {sP1w} offen offset:64 sc1""")
        self.stamp("pub1")
        vKa.free(), vKb.free(), ones.free(), vP1w.free(), sP1w.free()
        self.w1_setup()
        self.issue_w1a(self.opt.get("w1a_0", 0), limit=8)
        K.waitvm("q1")
        K("s_barrier")
        gemm(vWq, 0, 0, 32)
        vWq.free(), vWr.free()
        self.stamp("qgemm")
        L0, Ld = self.label("h1"), self.label("h1d")
        K(f"""s_mov_b32 {self.sCnt}, 40000
        {L0}:
        buffer_load_dwordx4 {g[0:4]}, {vP1r}, {self.sWS}, {sP1r} offen sc1
        buffer_load_dwordx4 {g[4:8]}, {vP1r}, {self.sWS}, {sP1r} offen offset:64 sc1
        s_waitcnt vmcnt(0)
        v_cmp_ne_u32 vcc, {self.sTag}, {g[3]}
        v_cmp_ne_u32 {self.sPair}, {self.sTag}, {g[7]}
        s_or_b64 vcc, vcc, {self.sPair}
        s_cbranch_scc0 {Ld}
        s_sub_u32 {self.sCnt}, {self.sCnt}, 1
        s_cbranch_scc0 {L0}
        {Ld}:""")
        self.stamp("hop1")
        vals = [g[0], g[1], g[2], g[4], g[5]]
        tmp5 = [tt[0], tt[1], tt[2], tt[3], t]
        for ror in (4, 8):
            for x in vals:
                K(f"v_add_f32_dpp {x}, {x}, {x} row_ror:{ror} row_mask:0xf bank_mask:0xf")
        for sw in ("v_permlane16_swap_b32", "v_permlane32_swap_b32"):
            for x, y in zip(vals, tmp5):
                K(f"v_mov_b32 {y}, {x}")
            for x, y in zip(vals, tmp5):
                K(f"{sw} {x}, {y}")
            for x, y in zip(vals, tmp5):
                K(f"v_add_f32 {x}, {x}, {y}")
        K(f"""v_cvt_pk_bf16_f32 {g[0]}, {g[0]}, {g[1]}
        v_cvt_pk_bf16_f32 {g[1]}, {g[2]}, {g[4]}
        v_cvt_pk_bf16_f32 {g[2]}, {g[5]}, {g[5]}
        s_lshl_b32 {self.sT0}, {self.sRB}, 6
        s_add_u32 {self.sT0}, {self.sT0}, {sP2}
        s_mov_b64 exec, 15
        buffer_store_dwordx4 {g[0:4]}, {self.vL16}, {self.sWS}, {self.sT0} offen sc1
        s_mov_b64 exec, -1""")
        self.stamp("pub2")
        vP1r.free(), sP1r.free()
        K("s_barrier")
        self.issue_w1a(self.opt.get("w1a_1", 0))
        self.wo_to_regs()
        finish(cs, kb)
        feature_map()
        K("s_waitcnt lgkmcnt(0)\ns_barrier")
        self.issue_w1bc(self.opt.get("w1bc_1", 0))
        self.stamp("qsoft")
        L0, Ld = self.label("h2"), self.label("h2d")
        K(f"""s_mov_b32 {self.sCnt}, 40000
        {L0}:
        buffer_load_dwordx4 {g[0:4]}, {self.vL16}, {self.sWS}, {sP2} offen sc1
        s_waitcnt vmcnt(0)
        v_cmp_ne_u32 vcc, {self.sTag}, {g[3]}
        s_cbranch_vccz {Ld}
        s_sub_u32 {self.sCnt}, {self.sCnt}, 1
        s_cbranch_scc0 {L0}
        {Ld}:""")
        self.stamp("hop2")
        sP2.free()
        K(f"""v_and_b32 {t}, 15, {self.vL}
        v_lshrrev_b32 {t2}, 4, {self.vL}
        v_lshlrev_b32 {t2}, 3, {t2}
        v_lshl_add_u32 {t}, {t}, 5, {t2}
        s_mul_i32 {self.sT0}, {self.sV}, {17*32}
        v_add_u32 {t}, {self.sT0}, {t}
        ds_write_b64 {t}, {g[0:2]} offset:{L_KVA}
        v_lshl_add_u32 {t2}, {self.vC}, 1, {t2}
        v_add_u32 {t2}, {self.sT0}, {t2}
        ds_write_b16 {t2}, {g[2]} offset:{L_KVA + 512}
        v_min_u32 {t}, 16, {self.vN}
        v_mul_u32_u24 {t2}, 17, {self.vG}
        v_add_u32 {t}, {t}, {t2}
        v_lshlrev_b32 {t}, 5, {t}
        s_waitcnt lgkmcnt(0)
        s_barrier""")
        for a in range(2):
            for s in range(2):
                K(f"ds_read_b128 {Wb[0][8*a+4*s:8*a+4*s+4]}, {t} offset:{L_KVA + a*2*17*32 + s*16}")
        for a, Pa in enumerate((P0, P1)):
            K(f"""{MF32} {Pa}, {Wb[0][8*a:8*a+4]}, {phi[8*a:8*a+4]}, 0
            {MF32} {Pa}, {Wb[0][8*a+4:8*a+8]}, {phi[8*a+4:8*a+8]}, {Pa}""")
        self.sF2 = S.alloc()
        K(f"""s_lshl_b32 {self.sT0}, {self.sV}, 15
        s_lshl_b32 {self.sT1}, {self.sT}, 11
        s_add_u32 {self.sT0}, {self.sT0}, {self.sT1}
        s_add_u32 {self.sT0}, {self.sT0}, {self.sRBB}
        s_lshl_b32 {self.sF2}, {self.sV}, 7
        s_lshl_b32 {self.sT1}, {self.sT}, 2
        s_add_u32 {self.sF2}, {self.sF2}, {self.sT1}
        s_add_u32 {self.sF2}, {self.sF2}, {self.sRBB}
        s_add_u32 {self.sF2}, {self.sF2}, {RB_FL}""")
        for a, Pa in enumerate((P0, P1)):
            K(f"""v_add_f32 {Pa[8]}, 0x358637bd, {Pa[8]}
            v_rcp_f32 {Pa[8]}, {Pa[8]}""")
            for r in range(8):
                K(f"v_mul_f32 {Pa[r]}, {Pa[r]}, {Pa[8]}")
            for r in range(4):
                K(f"v_cvt_pk_bf16_f32 {kb[4*a+r]}, {Pa[2*r]}, {Pa[2*r+1]}")
            K(f"buffer_store_dwordx4 {kb[4*a:4*a+4]}, {self.vL16}, {self.sWS}, {self.sT0} offen offset:{RB_O + a*1024} sc1", "ost")
        K.waitvm("ost")
        self.set_flag(self.sF2)
        self.stamp("oflag")
        for r in (Wb[0], Wb[1], acc, sm, sq0, sq1, cs, phiA, kb, P0, P1, tt, phi, g, self.vRstd, self.vCl, self.vWa, t, t2, t3):
            r.free()
        self.X.free()
        self.sChW.free()

    def ln_scalars(self, vSum, vSq, vRstd, vSd, t, t2, t3):
        K = self.K
        K(f"""v_mul_f32 {vSum}, 0xbb000000, {vSum}
        v_mul_f32 {vSq}, 0x3b000000, {vSq}
        v_fma_f32 {vSq}, -{vSum}, {vSum}, {vSq}
        v_max_f32 {vSq}, 0, {vSq}
        v_add_f32 {vSq}, 0x3727c5ac, {vSq}
        v_rsq_f32 {vRstd}, {vSq}""")
        if vSd is not None:
            K(f"v_mul_f32 {vSd}, {vSq}, {vRstd}")
        K(f"""v_cvt_pk_bf16_f32 {t}, {vSum}, {vSum}
        v_and_b32 {t2}, 0xffff0000, {t}
        v_sub_f32 {t2}, {vSum}, {t2}
        v_cvt_pk_bf16_f32 {t2}, {t2}, {t2}
        v_cmp_eq_u32 vcc, 0, {self.vG}
        v_cndmask_b32 {self.augB[0]}, {t2}, {t}, vcc""")

    def pair_addr(self, dst, pitch):
        K, V = self.K, self.V
        t, t2, t3 = V.alloc(), V.alloc(), V.alloc()
        K(f"""v_lshrrev_b32 {t}, 3, {self.vL}
        v_bfe_u32 {t2}, {self.vL}, 4, 1
        v_bfe_u32 {t3}, {self.vL}, 2, 1
        v_xor_b32 {t2}, {t2}, {t3}
        v_lshlrev_b32 {t2}, 2, {t2}
        v_add_u32 {t2}, {t2}, {self.vC}
        v_mul_u32_u24 {t}, {pitch}, {t}
        v_lshl_add_u32 {dst[0]}, {t2}, 4, {t}""")
        for u in range(1, 4):
            K(f"v_add_u32 {dst[u]}, {u*(8*pitch - 1024)}, {dst[0]}")
        t.free(), t2.free(), t3.free()

    def issue_wo(self):
        K, V = self.K, self.V
        va = V.alloc(4)
        self.pair_addr(va, 1024)
        K(f"""s_and_b32 {self.sT0}, {self.sT}, 7
        s_lshl_b32 {self.sT0}, {self.sT0}, 7
        s_lshl_b32 {self.sT1}, {self.sV}, 17
        s_add_u32 {self.sT0}, {self.sT0}, {self.sT1}""")
        for b in range(4):
            if b:
                K(f"s_add_u32 {self.sT0}, {self.sT0}, {32*1024}")
            for u in range(4):
                self.dma(va[u], self.sWO, self.sT0, m0=f"s_add_u32 m0, {self.sM0x}, {b*4096}" if u == 0 else None, imm=u * 1024, tag="wo")
        va.free()

    def pair_read_addr(self, dst, ct_sreg_or_int, base):
        K, V = self.K, self.V
        t, t2 = V.alloc(), V.alloc()
        K(f"""v_lshl_add_u32 {t}, {self.vG}, 2, {self.vR}
        v_lshlrev_b32 {t}, 7, {t}
        v_lshrrev_b32 {t2}, 1, {self.vR}
        v_xor_b32 {t2}, {ct_sreg_or_int}, {t2}
        v_lshlrev_b32 {t2}, 1, {t2}
        v_add_u32 {t2}, {t2}, {self.vH16}
        v_lshlrev_b32 {t2}, 2, {t2}
        v_add_u32 {t2}, {t2}, {self.vC}
        v_lshl_add_u32 {dst}, {t2}, 3, {t}
        v_add_u32 {dst}, {base}, {dst}""")
        t.free(), t2.free()

    def wo_to_regs(self):
        K, V, A = self.K, self.V, self.A
        self.WO = A.alloc(128)
        va, vb = V.alloc(), V.alloc()
        K(f"""s_lshl_b32 {self.sT0}, {self.sKH}, 15
        s_add_u32 {self.sT0}, {self.sT0}, {L_XS}""")
        self.pair_read_addr(va, self.sKH, self.sT0)
        K(f"v_xor_b32 {vb}, 64, {va}")
        for ks in range(16):
            self.trread(self.WO[8 * ks:8 * ks + 4], va, ks * 2048, ks * 2048 + 1024)
            self.trread(self.WO[8 * ks + 4:8 * ks + 8], vb, ks * 2048, ks * 2048 + 1024)
        va.free(), vb.free()

    def w1_setup(self):
        K, V, S = self.K, self.V, self.S
        self.vW1a = V.alloc(4)
        self.pair_addr(self.vW1a, 3584)
        self.vW1b, self.vW1c = V.alloc(), V.alloc()
        t, t2 = V.alloc(), V.alloc()
        K(f"""v_lshrrev_b32 {t}, 2, {self.vL}
        v_mul_u32_u24 {t}, 3584, {t}
        v_lshl_add_u32 {self.vW1b}, {self.vC}, 4, {t}
        v_lshrrev_b32 {t}, 1, {self.vL}
        v_mul_u32_u24 {t}, 3584, {t}
        v_and_b32 {t2}, 1, {self.vL}
        v_lshl_add_u32 {self.vW1c}, {t2}, 4, {t}""")
        t.free(), t2.free()
        self.sOffA, self.sOffB, self.sOffC = S.alloc(), S.alloc(), S.alloc()
        K(f"""s_mul_i32 {self.sT0}, {self.sT}, 224
        s_lshl_b32 {self.sOffA}, {self.sQ}, 5
        s_add_u32 {self.sOffA}, {self.sOffA}, {self.sT0}
        s_xor_b32 {self.sOffB}, {self.sQ}, 2
        s_lshr_b32 {self.sT1}, {self.sOffB}, 1
        s_lshl_b32 {self.sT1}, {self.sT1}, 2
        s_and_b32 {self.sOffB}, {self.sQ}, 1
        s_add_u32 {self.sOffB}, {self.sOffB}, {self.sT1}
        s_lshl_b32 {self.sOffB}, {self.sOffB}, 5
        s_add_u32 {self.sOffB}, {self.sOffB}, {self.sT0}
        s_and_b32 {self.sT1}, {self.sQ}, 1
        s_xor_b32 {self.sT1}, {self.sT1}, 1
        s_mul_i32 {self.sOffC}, {self.sT1}, 192
        s_add_u32 {self.sOffC}, {self.sOffC}, {self.sT0}""")
        self.w1a_done = 0
        self.w1bc_done = 0

    def issue_w1a(self, n, limit=16):
        K = self.K
        for _ in range(n):
            u = self.w1a_done
            if u >= limit:
                break
            b = u // 4
            K(f"""s_mul_i32 {self.sT0}, {self.sV}, {32*3584}
            s_add_u32 {self.sT0}, {self.sT0}, {self.sOffA}
            s_add_u32 {self.sT0}, {self.sT0}, {b*128*3584}
            s_lshl_b32 {self.sT1}, {self.sV}, 12""")
            self.dma(self.vW1a[u % 4], self.sW1, self.sT0, m0=f"s_add_u32 m0, {self.sT1}, {L_W1A + b*16384}", imm=(u % 4) * 1024, tag="w1")
            self.w1a_done += 1

    def issue_w1bc(self, n):
        K = self.K
        for _ in range(n):
            b = self.w1bc_done
            if b >= 4:
                break
            K(f"""s_mul_i32 {self.sT0}, {self.sV}, {32*3584}
            s_add_u32 {self.sT0}, {self.sT0}, {b*128*3584}
            s_add_u32 {self.sT2}, {self.sT0}, {self.sOffB}
            s_lshl_b32 {self.sT1}, {self.sV}, 11""")
            self.dma(self.vW1b, self.sW1, self.sT2, m0=f"s_add_u32 m0, {self.sT1}, {L_W1B + b*8192}", tag="w1")
            K(f"s_add_u32 {self.sT2}, {self.sT2}, {16*3584}")
            self.dma(self.vW1b, self.sW1, self.sT2, m0=f"s_add_u32 m0, {self.sT1}, {L_W1B + b*8192 + 1024}", tag="w1")
            K(f"""s_add_u32 {self.sT2}, {self.sT0}, {self.sOffC}
            s_lshl_b32 {self.sT1}, {self.sV}, 10""")
            self.dma(self.vW1c, self.sW1, self.sT2, m0=f"s_add_u32 m0, {self.sT1}, {L_W1C + b*4096}", tag="w1")
            self.w1bc_done += 1

    def w2_setup(self):
        K, V, S = self.K, self.V, self.S
        self.vW2 = V.alloc()
        t, t2 = V.alloc(), V.alloc()
        K(f"""v_lshrrev_b32 {t}, 4, {self.vL}
        v_xor_b32 {t2}, {t}, {self.vR}
        v_add_u32 {t2}, {self.sG}, {t2}
        v_and_b32 {t2}, 3, {t2}
        v_lshlrev_b32 {t2}, 2, {t2}
        v_add_u32 {t2}, {t2}, {self.vC}
        v_lshlrev_b32 {t}, 10, {t}
        v_lshl_add_u32 {self.vW2}, {t2}, 4, {t}
        s_lshl_b32 {self.sT0}, {self.sQ}, 8
        v_add_u32 {self.vW2}, {self.sT0}, {self.vW2}""")
        t.free(), t2.free()
        self.sW2r = S.alloc(12, 1)
        for i in range(4):
            K(f"""s_add_u32 {self.sT0}, {self.sQ}, {i}
            s_and_b32 {self.sT0}, {self.sT0}, 3
            s_mul_i32 {self.sT1}, {self.sG}, 448
            s_mul_i32 {self.sT2}, {self.sT0}, 112
            s_add_u32 {self.sT1}, {self.sT1}, {self.sT2}
            s_lshl_b32 {self.sT2}, {self.sV}, 2
            s_add_u32 {self.sT1}, {self.sT1}, {self.sT2}
            s_lshl_b32 {self.sT2}, {self.sT0}, 4
            s_add_u32 {self.sT2}, {self.sT2}, {self.sT1}
            s_lshl_b32 {self.sW2r[3*i]}, {self.sT2}, 10
            s_xor_b32 {self.sT2}, {self.sT0}, 2
            s_lshr_b32 {self.sT2}, {self.sT2}, 1
            s_lshl_b32 {self.sT2}, {self.sT2}, 2
            s_and_b32 {self.sT0}, {self.sT0}, 1
            s_add_u32 {self.sT2}, {self.sT2}, {self.sT0}
            s_lshl_b32 {self.sT2}, {self.sT2}, 4
            s_add_u32 {self.sT2}, {self.sT2}, {self.sT1}
            s_lshl_b32 {self.sW2r[3*i+1]}, {self.sT2}, 10
            s_xor_b32 {self.sT0}, {self.sT0}, 1
            s_mul_i32 {self.sT0}, {self.sT0}, 96
            s_add_u32 {self.sT0}, {self.sT0}, {self.sT1}
            s_lshl_b32 {self.sW2r[3*i+2]}, {self.sT0}, 10""")
        self.sM0v = S.alloc()
        K(f"s_lshl_b32 {self.sM0v}, {self.sV}, 10")
        self.w2_done = 0

    def issue_w2(self, upto, P=None):
        P = self.K if P is None else P
        while self.w2_done < upto:
            z = self.w2_done
            i, ks = divmod(z, 7)
            base, add = (3 * i, ks) if ks < 4 else (3 * i + 1, ks - 4) if ks < 6 else (3 * i + 2, 0)
            if add:
                P(f"s_add_u32 {self.sT3}, {self.sW2r[base]}, {add*16*1024}")
                so = self.sT3
            else:
                so = self.sW2r[base]
            self.dma(self.vW2, self.sW2, so, m0=f"s_add_u32 m0, {self.sM0v}, {w2slot(z)}", tag=f"w2_{z}", P=P)
            self.w2_done += 1

    def selector(self, dst, natural):
        K, V = self.K, self.V
        w, q, one = V.alloc(), V.alloc(), V.alloc()
        for fr in range(2):
            if natural:
                K(f"""v_lshlrev_b32 {w}, 3, {self.vG}
                v_sub_u32 {w}, {self.vN}, {w}
                v_subrev_u32 {w}, {16*fr}, {w}
                v_ashrrev_i32 {q}, 1, {w}""")
            else:
                K(f"""v_subrev_u32 {w}, {16*fr}, {self.vN}
                v_ashrrev_i32 {q}, 3, {w}
                v_lshlrev_b32 {q}, 1, {q}
                v_bfe_u32 {one}, {w}, 1, 1
                v_add_u32 {q}, {q}, {one}
                v_bfe_u32 {one}, {w}, 2, 1
                v_cmp_eq_u32 vcc, {one}, {self.vG}
                v_cndmask_b32 {q}, -1, {q}, vcc""")
            K(f"""v_and_b32 {w}, 1, {w}
            v_lshlrev_b32 {w}, 4, {w}
            v_mov_b32 {one}, 0x3f80
            v_lshlrev_b32 {one}, {w}, {one}""")
            for r in range(4):
                K(f"""v_cmp_eq_u32 vcc, {r}, {q}
                v_cndmask_b32 {dst[4*fr+r]}, 0, {one}, vcc""")
        w.free(), q.free(), one.free()

    def phase_b(self):
        K, V, A, S = self.K, self.V, self.A, self.S
        self.issue_w1a(self.opt.get("w1a_2", 0))
        self.issue_w1bc(self.opt.get("w1bc_2", 0))
        keep, send = V.alloc(16), V.alloc(16)
        sel = V.alloc(8)
        self.selector(sel, True)
        K(f"""{MF32} {keep}, {sel[0:4]}, {self.xres[0:4]}, 0
        {MF32} {keep}, {sel[4:8]}, {self.xres[4:8]}, {keep}""")
        vA = V.alloc()
        sB, sO = S.alloc(), S.alloc()
        K(f"""v_and_b32 {vA}, 7, {self.vL}
        v_lshlrev_b32 {vA}, 2, {vA}
        s_lshl_b32 {sB}, {self.sR}, 7
        s_lshl_b32 {self.sT0}, {self.sKH}, 5
        s_add_u32 {sB}, {sB}, {self.sT0}
        s_add_u32 {sB}, {sB}, {self.sRBB}
        s_add_u32 {sB}, {sB}, {RB_FL}
        s_lshl_b32 {sO}, {self.sR}, 15
        s_lshl_b32 {self.sT0}, {self.sKH}, 14
        s_add_u32 {sO}, {sO}, {self.sT0}
        s_add_u32 {sO}, {sO}, {self.sRBB}""")
        self.poll_flags(vA, sB, [self.sF2])
        self.stamp("e2")
        O = A.alloc(64)
        for ks in range(16):
            if ks and ks % 4 == 0:
                K(f"s_add_u32 {sO}, {sO}, 4096")
            K(f"buffer_load_dwordx4 {O[4*ks:4*ks+4]}, {self.vL16}, {self.sWS}, {sO} offen offset:{RB_O + (ks%4)*1024} sc1")
        self.set_flag(self.sF2, safe=True)
        self.issue_w1a(self.opt.get("w1a_3", 16))
        self.issue_w1bc(self.opt.get("w1bc_3", 4))
        for ks in range(16):
            K(f"""{MF32} {send}, {self.WO[8*ks+4:8*ks+8]}, {O[4*ks:4*ks+4]}, {'0' if ks == 0 else send}
            {MF32} {keep}, {self.WO[8*ks:8*ks+4]}, {O[4*ks:4*ks+4]}, {keep}""")
        self.stamp("bgemm")
        va, vb = V.alloc(), V.alloc()
        K(f"""s_lshl_b32 {self.sT0}, {self.sV}, 12
        v_add_u32 {va}, {self.sT0}, {self.vL16}
        v_xor_b32 {vb}, 0x2000, {va}""")
        for q in range(4):
            K(f"ds_write_b128 {va}, {send[4*q:4*q+4]} offset:{L_RED + q*1024}")
        self.sF3 = S.alloc()
        sSt = S.alloc()
        K(f"""s_and_b32 {self.sT1}, {self.sT}, 7
        s_lshl_b32 {self.sT2}, {self.sT1}, 1
        s_add_u32 {self.sT2}, {self.sT2}, {self.sKH}
        s_lshl_b32 {sO}, {self.sR}, 15
        s_lshl_b32 {self.sT0}, {self.sT2}, 11
        s_add_u32 {sO}, {sO}, {self.sT0}
        s_add_u32 {sO}, {sO}, {self.sRBB}
        s_add_u32 {sO}, {sO}, {RB_H}
        s_lshl_b32 {self.sF3}, {self.sR}, 7
        s_lshl_b32 {self.sT0}, {self.sT2}, 2
        s_add_u32 {self.sF3}, {self.sF3}, {self.sT0}
        s_add_u32 {self.sF3}, {self.sF3}, {self.sRBB}
        s_add_u32 {self.sF3}, {self.sF3}, {RB_FL + 512}
        s_lshl_b32 {sSt}, {self.sR}, 3
        s_add_u32 {sSt}, {sSt}, {self.sT1}
        s_lshl_b32 {sSt}, {sSt}, 9
        s_lshl_b32 {self.sT0}, {self.sKH}, 3
        s_add_u32 {sSt}, {sSt}, {self.sT0}
        s_add_u32 {sSt}, {sSt}, {self.sRBB}
        s_add_u32 {sSt}, {sSt}, {RB_ST2}
        s_waitcnt lgkmcnt(0)
        s_barrier""")
        for q in range(4):
            K(f"ds_read_b128 {send[4*q:4*q+4]}, {vb} offset:{L_RED + q*1024}")
        for r in range(16):
            K(f"v_add_f32 {keep[r]}, {keep[r]}, {send[r]}")
        hb = sel
        for r in range(8):
            K(f"v_cvt_pk_bf16_f32 {hb[r]}, {keep[2*r]}, {keep[2*r+1]}")
        K(f"""buffer_store_dwordx4 {hb[0:4]}, {self.vL16}, {self.sWS}, {sO} offen sc1
        buffer_store_dwordx4 {hb[4:8]}, {self.vL16}, {self.sWS}, {sO} offen offset:1024 sc1""")
        st = V.alloc(4)
        K(f"""v_add_f32 {st[0]}, {keep[0]}, {keep[1]}
        v_mul_f32 {st[1]}, {keep[0]}, {keep[0]}
        v_add_f32 {st[2]}, {keep[2]}, {keep[3]}
        v_mul_f32 {st[3]}, {keep[1]}, {keep[1]}""")
        for r in range(2, 16):
            if r >= 4:
                K(f"v_add_f32 {st[2*(r%2)]}, {st[2*(r%2)]}, {keep[r]}")
            K(f"v_fmac_f32 {st[1+2*(r%2)]}, {keep[r]}, {keep[r]}")
        K(f"""v_add_f32 {st[0]}, {st[0]}, {st[2]}
        v_add_f32 {st[1]}, {st[1]}, {st[3]}""")
        self.half_add(st[0], st[2])
        self.half_add(st[1], st[3])
        K(f"""v_lshlrev_b32 {va}, 4, {self.vN}
        buffer_store_dwordx2 {st[0:2]}, {va}, {self.sWS}, {sSt} offen sc1""", "hst")
        K.waitvm("hst")
        self.set_flag(self.sF3)
        self.stamp("hflag")
        for r in (keep, send, sel, vA, va, vb, st, self.xres, O, self.WO, sB, sO, sSt, self.sF2):
            r.free()

    def phase_c(self):
        K, V, A, S = self.K, self.V, self.A, self.S
        self.issue_w1a(16)
        self.issue_w1bc(4)
        self.vW1a.free(), self.vW1b.free(), self.vW1c.free()
        self.w2_setup()
        t, t2, t3 = V.alloc(), V.alloc(), V.alloc()
        augA = [V.alloc(4) for _ in range(4)]
        K(f"v_lshlrev_b32 {t}, 1, {self.vN}\nv_and_b32 {t2}, 31, {t}")
        K(f"""buffer_load_ushort {augA[0][1]}, {t}, {self.sB1}, {self.sOffA} offen
        buffer_load_ushort {augA[1][1]}, {t}, {self.sB1}, {self.sOffA} offen offset:64
        buffer_load_ushort {augA[2][1]}, {t}, {self.sB1}, {self.sOffB} offen
        buffer_load_ushort {augA[3][1]}, {t2}, {self.sB1}, {self.sOffC} offen""")
        vr = V.alloc(4)
        self.pair_read_addr(vr[0], 0, L_W1A)
        K(f"""v_xor_b32 {vr[1]}, 64, {vr[0]}
        v_lshl_add_u32 {t}, {self.vG}, 2, {self.vR}
        v_lshl_add_u32 {t2}, {self.vH16}, 2, {self.vC}
        v_lshlrev_b32 {t3}, 6, {t}
        v_lshl_add_u32 {vr[2]}, {t2}, 3, {t3}
        v_add_u32 {vr[2]}, {L_W1B}, {vr[2]}
        v_lshlrev_b32 {t3}, 5, {t}
        v_lshl_add_u32 {vr[3]}, {self.vC}, 3, {t3}
        v_add_u32 {vr[3]}, {L_W1C}, {vr[3]}""")
        kst = (2048, 2048, 1024, 512)
        K.waitvm("w1")
        K("s_barrier")
        self.stamp("w1in")
        self.issue_w2(self.opt.get("w2_0", 0))
        Wb = V.alloc(32)
        cs = V.alloc(4)
        sSt = S.alloc()
        K(f"""s_movk_i32 {sSt}, 1024
        s_cmp_eq_u32 {self.sV}, 1
        s_cselect_b64 vcc, -1, 0
        v_cndmask_b32 {t}, {vr[0]}, {vr[1]}, vcc
        s_cmp_eq_u32 {self.sV}, 2
        s_cselect_b64 vcc, -1, 0
        v_cndmask_b32 {t}, {t}, {vr[2]}, vcc
        s_cselect_b32 {sSt}, 512, {sSt}
        s_cmp_eq_u32 {self.sV}, 3
        s_cselect_b64 vcc, -1, 0
        v_cndmask_b32 {t}, {t}, {vr[3]}, vcc
        s_cselect_b32 {sSt}, 256, {sSt}""")
        for ks in range(32):
            b = Wb[4 * (ks % 8):4 * (ks % 8) + 4]
            K(f"""ds_read_b64_tr_b16 {b[0:2]}, {t}
            v_add_u32 {t}, {sSt}, {t}
            ds_read_b64_tr_b16 {b[2:4]}, {t}
            v_add_u32 {t}, {sSt}, {t}""")
            if ks >= 4:
                k2 = ks - 4
                K(f"{MF16} {cs}, {self.sel16}, {Wb[4*(k2%8):4*(k2%8)+4]}, {'0' if k2 == 0 else cs}")
        for k2 in range(28, 32):
            K(f"{MF16} {cs}, {self.sel16}, {Wb[4*(k2%8):4*(k2%8)+4]}, {cs}")
        self.hilo_pair(t2, cs[0], t3)
        K(f"""s_lshl_b32 {self.sT0}, {self.sV}, 7
        v_lshlrev_b32 {t}, 2, {self.vN}
        v_add_u32 {t3}, {self.sT0}, {t}
        ds_write_b32 {t3}, {t2} offset:{L_CS}
        s_waitcnt lgkmcnt(0)
        s_barrier""")
        for c in range(4):
            K(f"""ds_read_b32 {augA[c][0]}, {t} offset:{L_CS + c*128}
            v_lshl_or_b32 {augA[c][1]}, {augA[c][1]}, 16, {augA[c][1]}
            v_mov_b32 {augA[c][2]}, 0
            v_mov_b32 {augA[c][3]}, 0""")
        K("s_waitcnt lgkmcnt(0)\ns_barrier")
        cs.free(), sSt.free()
        self.stamp("cs")
        vA = V.alloc()
        sB, sH = S.alloc(), S.alloc()
        K(f"""v_and_b32 {vA}, 15, {self.vL}
        v_lshlrev_b32 {vA}, 2, {vA}
        s_lshl_b32 {sB}, {self.sV}, 7
        s_add_u32 {sB}, {sB}, {self.sRBB}
        s_add_u32 {sB}, {sB}, {RB_FL + 512}
        s_lshl_b32 {sH}, {self.sV}, 15
        s_add_u32 {sH}, {sH}, {self.sRBB}
        s_add_u32 {sH}, {sH}, {RB_H}
        s_lshl_b32 {self.sT0}, {self.sV}, 12
        s_add_u32 {self.sT0}, {self.sT0}, {self.sRBB}
        s_add_u32 {self.sT0}, {self.sT0}, {RB_ST2}
        v_lshlrev_b32 {t}, 11, {self.vG}
        v_lshl_add_u32 {t}, {self.vN}, 4, {t}""")
        self.poll_flags(vA, sB, [self.sF3])
        self.stamp("e3")
        st = V.alloc(16)
        for i in range(4):
            K(f"buffer_load_dwordx4 {st[4*i:4*i+4]}, {t}, {self.sWS}, {self.sT0} offen offset:{i*512} sc1")
        H = A.alloc(128)
        self.hres = V.alloc(8)
        K(f"""s_lshl_b32 {self.sT1}, {self.sQ}, 2
        s_add_u32 {self.sT1}, {self.sT1}, {self.sG}
        s_lshl_b32 {self.sT1}, {self.sT1}, 11
        s_add_u32 {self.sT1}, {self.sT1}, {sH}""")
        for ks in range(32):
            if ks and ks % 4 == 0:
                K(f"s_add_u32 {sH}, {sH}, 4096")
            K(f"buffer_load_dwordx4 {H[4*ks:4*ks+4]}, {self.vL16}, {self.sWS}, {sH} offen offset:{(ks%4)*1024} sc1")
        K(f"""buffer_load_dwordx4 {self.hres[0:4]}, {self.vL16}, {self.sWS}, {self.sT1} offen sc1
        buffer_load_dwordx4 {self.hres[4:8]}, {self.vL16}, {self.sWS}, {self.sT1} offen offset:1024 sc1""")
        self.set_flag(self.sF3, safe=True)
        self.issue_w2(12)
        for i in range(1, 8):
            K(f"""v_add_f32 {st[0]}, {st[0]}, {st[2*i]}
            v_add_f32 {st[1]}, {st[1]}, {st[2*i+1]}""")
        self.half_add(st[0], st[2])
        self.half_add(st[1], st[3])
        vRs, vSd, vC1, vM2 = V.alloc(), V.alloc(), V.alloc(), V.alloc()
        self.ln_scalars(st[0], st[1], vRs, vSd, t, t2, t3)
        K(f"""v_cvt_pk_bf16_f32 {t}, {vSd}, {vSd}
        v_and_b32 {t}, 0xffff0000, {t}
        v_sub_f32 {t2}, {vSd}, {t}
        v_cvt_pk_bf16_f32 {t}, {vSd}, {t2}
        v_and_b32 {t3}, 0xffff0000, {t}
        v_sub_f32 {t2}, {t2}, {t3}
        v_cvt_pk_bf16_f32 {t2}, {t2}, 0
        v_cndmask_b32 {self.augB[1]}, {t2}, {t}, vcc
        v_mul_f32 {vC1}, {LOG2E}, {vRs}
        v_mul_f32 {vM2}, -2.0, {vRs}""")
        st.free(), vA.free(), sB.free(), sH.free()
        accs = [V.alloc(16) for _ in range(4)]
        self.act = V.alloc(28)
        sAct = S.alloc()
        K(f"""s_lshl_b32 {sAct}, {self.sV}, 4
        s_add_u32 {sAct}, {sAct}, {self.sT}
        s_mul_i32 {sAct}, {sAct}, 7168
        s_add_u32 {sAct}, {sAct}, {self.sRBB}
        s_add_u32 {sAct}, {sAct}, {RB_ACT}""")

        def gemm(tiles):
            nb, pre = 8, 4
            seq = [(ks, c) for ks in range(32) for c in tiles]
            rd = lambda i: self.trread(Wb[4 * (i % nb):4 * (i % nb) + 4], vr[seq[i][1]], seq[i][0] * kst[seq[i][1]],
                                       seq[i][0] * kst[seq[i][1]] + kst[seq[i][1]] // 2)
            for c in tiles:
                K(f"{MF32} {accs[c]}, {augA[c]}, {self.augB}, 0")
            for i in range(pre):
                rd(i)
            for i, (ks, c) in enumerate(seq):
                if i + pre < len(seq):
                    rd(i + pre)
                K(f"{MF32} {accs[c]}, {Wb[4*(i%nb):4*(i%nb)+4]}, {H[4*ks:4*ks+4]}, {accs[c]}")

        tm = V.alloc(16)

        def mish(c):
            nr = 8 if c == 3 else 16
            a = accs[c]
            for h in range(nr // 8):
                x = a[8 * h:8 * h + 8]
                e, d = tm[0:8], tm[8:16]
                for r in range(8):
                    K(f"v_mul_f32 {e[r]}, {x[r]}, {vC1}")
                for r in range(8):
                    K(f"v_exp_f32 {e[r]}, {e[r]}")
                for r in range(8):
                    K(f"v_add_f32 {d[r]}, 2.0, {e[r]}")
                for r in range(8):
                    K(f"v_fma_f32 {d[r]}, {d[r]}, {e[r]}, 2.0")
                for r in range(8):
                    K(f"v_rcp_f32 {d[r]}, {d[r]}")
                for r in range(8):
                    K(f"v_fma_f32 {d[r]}, {d[r]}, {vM2}, {vRs}")
                for r in range(8):
                    K(f"v_mul_f32 {d[r]}, {d[r]}, {x[r]}")
                f = 2 * c + h
                for r in range(4):
                    K(f"v_cvt_pk_bf16_f32 {self.act[4*f+r]}, {d[2*r]}, {d[2*r+1]}")
                if f == 4:
                    K(f"s_add_u32 {sAct}, {sAct}, 4096")
                K(f"buffer_store_dwordx4 {self.act[4*f:4*f+4]}, {self.vL16}, {self.sWS}, {sAct} offen offset:{(f%4)*1024} sc1", "ast")

        gemm([0, 1])
        self.stamp("c01")
        K("s_barrier")
        self.issue_w2(28)
        gemm([2])
        gemm([3])
        self.stamp("c23")
        for c in range(4):
            mish(c)
        self.sF4 = S.alloc()
        K(f"""s_lshl_b32 {self.sF4}, {self.sV}, 7
        s_lshl_b32 {self.sT0}, {self.sT}, 2
        s_add_u32 {self.sF4}, {self.sF4}, {self.sT0}
        s_add_u32 {self.sF4}, {self.sF4}, {self.sRBB}
        s_add_u32 {self.sF4}, {self.sF4}, {RB_FL + 1024}""")
        K.waitvm("ast")
        self.set_flag(self.sF4)
        self.stamp("aflag")
        for r in accs + augA + [tm, vr, vRs, vSd, vC1, vM2, t, t2, t3, Wb, H, sAct, self.sF3, self.vW2, self.sW2r, self.sOffA, self.sOffB, self.sOffC]:
            r.free()

    def phase_d(self):
        K, V, A, S = self.K, self.V, self.A, self.S
        t, t2 = V.alloc(), V.alloc()
        vr = [V.alloc(4) for _ in range(3)]
        K(f"""v_lshl_add_u32 {t}, {self.vG}, 2, {self.vR}
        v_lshlrev_b32 {t}, 8, {t}
        v_lshl_add_u32 {t2}, {self.vH16}, 2, {self.vC}
        v_lshl_add_u32 {t}, {t2}, 3, {t}""")
        for ci in range(4):
            K(f"""v_xor_b32 {t2}, {ci}, {self.vR}
            v_lshl_add_u32 {vr[0][ci]}, {t2}, 6, {t}
            v_add_u32 {vr[1][ci]}, 0x10000, {vr[0][ci]}
            v_add_u32 {vr[2][ci]}, 0x20000, {vr[0][ci]}""")
        sel = V.alloc(8)
        self.selector(sel, False)
        accs = [V.alloc(16) for _ in range(4)]
        Wb = V.alloc(32)
        R = A.alloc(84)
        frag = lambda z: self.act[4 * z:4 * z + 4] if z < 7 else R[4 * (z - 7):4 * (z - 7) + 4]
        K(f"""{MF32} {accs[0]}, {sel[0:4]}, {self.hres[0:4]}, 0
        {MF32} {accs[0]}, {sel[4:8]}, {self.hres[4:8]}, {accs[0]}""")
        started = {0}

        def gemm(seq):
            nb, pre = 8, 4

            def rd(i):
                z, ci = seq[i]
                a = w2slot(z)
                self.trread(Wb[4 * (i % nb):4 * (i % nb) + 4], vr[a >> 16][ci], a & 0xffff, (a & 0xffff) + 2048)
            for i in range(pre):
                rd(i)
            for i, (z, ci) in enumerate(seq):
                if i + pre < len(seq):
                    rd(i + pre)
                K(f"{MF32} {accs[ci]}, {Wb[4*(i%nb):4*(i%nb)+4]}, {frag(z)}, {accs[ci] if ci in started else 0}")
                started.add(ci)

        K("s_barrier")
        gemm([(z, ci) for z in range(7) for ci in range(4)])
        self.stamp("down")
        vA = V.alloc()
        sB, sA = S.alloc(), S.alloc()
        K(f"""v_lshlrev_b32 {vA}, 2, {self.vC}
        s_lshl_b32 {sB}, {self.sV}, 7
        s_lshl_b32 {self.sT0}, {self.sG}, 4
        s_add_u32 {sB}, {sB}, {self.sT0}
        s_add_u32 {sB}, {sB}, {self.sRBB}
        s_add_u32 {sB}, {sB}, {RB_FL + 1024}""")
        self.poll_flags(vA, sB, [self.sF4])
        self.stamp("e4")
        for i in range(1, 4):
            K(f"""s_add_u32 {self.sT0}, {self.sQ}, {i}
            s_and_b32 {self.sT0}, {self.sT0}, 3
            s_lshl_b32 {self.sT1}, {self.sG}, 2
            s_add_u32 {self.sT0}, {self.sT0}, {self.sT1}
            s_lshl_b32 {self.sT1}, {self.sV}, 4
            s_add_u32 {self.sT0}, {self.sT0}, {self.sT1}
            s_mul_i32 {sA}, {self.sT0}, 7168
            s_add_u32 {sA}, {sA}, {self.sRBB}
            s_add_u32 {sA}, {sA}, {RB_ACT}""")
            for ks in range(7):
                if ks == 4:
                    K(f"s_add_u32 {sA}, {sA}, 4096")
                K(f"buffer_load_dwordx4 {frag(7*i+ks)}, {self.vL16}, {self.sWS}, {sA} offen offset:{(ks%4)*1024} sc1")
        self.set_flag(self.sF4, safe=True)
        gemm([(z, ci) for z in range(7, 28) for ci in (1, 2, 3, 0)])
        self.stamp("dgemm")
        pb = V.alloc(24)
        for ci in range(1, 4):
            K(f"""s_add_u32 {self.sT0}, {self.sG}, {ci}
            s_and_b32 {self.sT0}, {self.sT0}, 3
            s_lshl_b32 {self.sT1}, {self.sQ}, 2
            s_add_u32 {self.sT0}, {self.sT0}, {self.sT1}
            s_mul_i32 {self.sT0}, {self.sT0}, 3
            s_add_u32 {self.sT0}, {self.sT0}, {ci-1}
            s_lshl_b32 {self.sT0}, {self.sT0}, 2
            s_add_u32 {self.sT0}, {self.sT0}, {self.sV}
            s_lshl_b32 {sA}, {self.sT0}, 11
            s_add_u32 {sA}, {sA}, {self.sRBB}
            s_add_u32 {sA}, {sA}, {RB_PART}""")
            p = pb[8 * (ci - 1):8 * ci]
            for r in range(8):
                K(f"v_cvt_pk_bf16_f32 {p[r]}, {accs[ci][2*r]}, {accs[ci][2*r+1]}")
            K(f"""buffer_store_dwordx4 {p[0:4]}, {self.vL16}, {self.sWS}, {sA} offen sc1
            buffer_store_dwordx4 {p[4:8]}, {self.vL16}, {self.sWS}, {sA} offen offset:1024 sc1""", "pst")
        sF5 = S.alloc()
        K(f"""s_add_u32 {sF5}, {self.sF4}, 512
        v_lshlrev_b32 {vA}, 4, {self.vC}
        s_lshl_b32 {sB}, {self.sV}, 7
        s_lshl_b32 {self.sT0}, {self.sQ}, 2
        s_add_u32 {sB}, {sB}, {self.sT0}
        s_add_u32 {sB}, {sB}, {self.sRBB}
        s_add_u32 {sB}, {sB}, {RB_FL + 1536}
        s_lshl_b32 {self.sT0}, {self.sQ}, 2
        s_add_u32 {self.sT0}, {self.sT0}, {self.sG}
        s_mul_i32 {self.sT0}, {self.sT0}, 12
        s_add_u32 {self.sT0}, {self.sT0}, {self.sV}
        s_lshl_b32 {sA}, {self.sT0}, 11
        s_add_u32 {sA}, {sA}, {self.sRBB}
        s_add_u32 {sA}, {sA}, {RB_PART}""")
        K.waitvm("pst")
        self.set_flag(sF5)
        self.stamp("pflag")
        self.poll_flags(vA, sB, [sF5])
        self.stamp("e5")
        for s in range(3):
            if s:
                K(f"s_add_u32 {sA}, {sA}, 8192")
            K(f"""buffer_load_dwordx4 {pb[8*s:8*s+4]}, {self.vL16}, {self.sWS}, {sA} offen sc1
            buffer_load_dwordx4 {pb[8*s+4:8*s+8]}, {self.vL16}, {self.sWS}, {sA} offen offset:1024 sc1""")
        self.set_flag(sF5, safe=True)
        vW, vR2, vO = V.alloc(), V.alloc(), V.alloc()
        K(f"""s_mul_i32 {self.sT0}, {self.sV}, 2560
        s_add_u32 {self.sT0}, {self.sT0}, {L_OUT}
        v_mul_u32_u24 {vW}, 80, {self.vN}
        v_lshl_add_u32 {vW}, {self.vG}, 3, {vW}
        v_add_u32 {vW}, {self.sT0}, {vW}
        v_lshrrev_b32 {t}, 2, {self.vL}
        v_mul_u32_u24 {vR2}, 80, {t}
        v_lshl_add_u32 {vR2}, {self.vC}, 4, {vR2}
        v_add_u32 {vR2}, {self.sT0}, {vR2}
        v_lshlrev_b32 {vO}, 10, {t}
        v_lshl_add_u32 {vO}, {self.vC}, 4, {vO}
        s_lshl_b32 {self.sT0}, {self.sQ}, 2
        s_add_u32 {self.sT0}, {self.sT0}, {self.sG}
        s_lshl_b32 {self.sT0}, {self.sT0}, 6
        s_add_u32 {sA}, {self.sT0}, {self.sXrow}
        s_add_u32 {sB}, {sA}, 16384""")
        for s in range(3):
            K(f"""{MF32} {accs[0]}, {sel[0:4]}, {pb[8*s:8*s+4]}, {accs[0]}
            {MF32} {accs[0]}, {sel[4:8]}, {pb[8*s+4:8*s+8]}, {accs[0]}""")
        ob = Wb
        for r in range(8):
            K(f"v_cvt_pk_bf16_f32 {ob[r]}, {accs[0][2*r]}, {accs[0][2*r+1]}")
        for i in range(4):
            K(f"ds_write_b64 {vW}, {ob[2*i:2*i+2]} offset:{16*i}")
        K("s_waitcnt lgkmcnt(0)")
        K(f"""ds_read_b128 {ob[8:12]}, {vR2}
        ds_read_b128 {ob[12:16]}, {vR2} offset:1280
        buffer_store_dwordx4 {ob[8:12]}, {vO}, {self.sOUT}, {sA} offen
        buffer_store_dwordx4 {ob[12:16]}, {vO}, {self.sOUT}, {sB} offen""")
        Le = self.label("ep")
        K(f"""s_or_b32 {self.sT0}, s2, {self.sV}
        s_cmp_lg_u32 {self.sT0}, 0
        s_cbranch_scc1 {Le}
        buffer_store_dword {self.vTag}, {self.vZero}, {self.sWS}, 0 offen offset:{WS_EPOCH} sc1
        {Le}:""")
        if self.stamps:
            K("s_waitcnt vmcnt(0)")
            self.stamp("end")
            K(f"""s_lshl_b32 {self.sT0}, s2, 2
            s_add_u32 {self.sT0}, {self.sT0}, {self.sV}
            s_lshl_b32 {self.sT0}, {self.sT0}, 8
            s_add_u32 {self.sT0}, {self.sT0}, {WS_STAMP}
            v_lshlrev_b32 {t}, 2, {self.vL}
            buffer_store_dword {self.vStamp}, {t}, {self.sWS}, {self.sT0} offen""")

    def build(self):
        self.prologue()
        self.phase_a()
        self.phase_b()
        self.phase_c()
        self.phase_d()
        self.K("L_end:\ns_endpgm")
        body = render(insert_nops(insert_waits(self.K)))
        header = open("cdna_kernels/" + NAME + ".s.ref").read().split("; Override launch")[0]
        return f"""{header}; @launch grid=(256,1,1) block=(256,1,1) lds=163840
.amdgcn_target "amdgcn-amd-amdhsa--gfx950"
.text
.globl {NAME}_kernel
.p2align 8
.type {NAME}_kernel,@function
{NAME}_kernel:
{body}
.section .rodata,"a"
.p2align 6
.amdhsa_kernel {NAME}_kernel
  .amdhsa_next_free_vgpr 512
  .amdhsa_next_free_sgpr 102
  .amdhsa_accum_offset 256
  .amdhsa_group_segment_fixed_size 0
  .amdhsa_kernarg_size 88
  .amdhsa_user_sgpr_count 2
  .amdhsa_user_sgpr_kernarg_segment_ptr 1
  .amdhsa_system_sgpr_workgroup_id_x 1
.end_amdhsa_kernel
"""


if __name__ == "__main__":
    import json
    out = sys.argv[1]
    stamps = len(sys.argv) > 2 and sys.argv[2] == "1"
    opt = json.loads(sys.argv[3]) if len(sys.argv) > 3 else {}
    g = Gen(stamps=stamps, LA=opt.get("LA", 2), opt=opt)
    text = g.build()
    open(out, "w").write(text)
    if stamps:
        open(out + ".stamps", "w").write("\n".join(g.stamp_names))
    print("vgpr high", g.V.high, "agpr high", g.A.high, "sgpr high", g.S.high, "lines", text.count("\n"))
```

```python
import sys
import gen as G
name = G.NAME + "_kernel"
def make(src, dst, i, j, mult=10, imode="min"):
    s = open(src).read()
    line = "; @launch grid=(256,1,1) block=(256,1,1) lds=163840"
    main = f"; @launch kernel={name} grid=(256,1,1) block=(256,1,1) lds=163840"
    spin = "; @launch kernel=spin_kernel grid=(1,1,1) block=(64,1,1) lds=0"
    red = lambda op, r: "\n".join([f"s_nop 1\n {op}_dpp {r}, {r}, {r} row_ror:{k} row_mask:0xf bank_mask:0xf" for k in (1, 2, 4, 8)] +
                                  [f"v_mov_b32 v8, {r}\n s_nop 1\n {sw} {r}, v8\n {op} {r}, {r}, v8" for sw in ("v_permlane16_swap_b32", "v_permlane32_swap_b32")])
    iop = "v_min_u32" if imode == "min" else "v_max_u32"
    code = f"""
.text
.globl spin_kernel
.p2align 8
.type spin_kernel,@function
spin_kernel:
    s_cmp_ge_u32 s2, 1
    s_cbranch_scc1 L_spin_end
    s_load_dwordx2 s[8:9], s[0:1], 80
    s_mov_b32 s10, 268435456
    s_mov_b32 s11, 0x20000
    v_lshlrev_b32 v1, 8, v0
    v_mov_b32 v4, {-1 if imode == 'min' else 0}
    v_mov_b32 v5, 0
    s_mov_b32 s12, {G.WS_STAMP}
    s_waitcnt lgkmcnt(0)
    .rept 16
    buffer_load_dword v2, v1, s[8:11], s12 offen offset:{4*i}
    buffer_load_dword v3, v1, s[8:11], s12 offen offset:{4*j}
    s_add_u32 s12, s12, 16384
    s_waitcnt vmcnt(0)
    {iop} v4, v4, v2
    v_max_u32 v5, v5, v3
    .endr
    {red(iop, 'v4')}
    {red('v_max_u32', 'v5')}
    v_sub_u32 v4, v5, v4
    s_nop 1
    v_readfirstlane_b32 s13, v4
    s_min_u32 s13, s13, 20000
    s_mul_i32 s13, s13, {mult}
    s_memrealtime s[14:15]
    s_waitcnt lgkmcnt(0)
L_spin:
    s_memrealtime s[16:17]
    s_waitcnt lgkmcnt(0)
    s_sub_u32 s18, s16, s14
    s_cmp_lt_u32 s18, s13
    s_cbranch_scc1 L_spin
L_spin_end:
    s_endpgm
.section .rodata,"a"
.p2align 6
.amdhsa_kernel spin_kernel
  .amdhsa_next_free_vgpr 16
  .amdhsa_next_free_sgpr 32
  .amdhsa_accum_offset 16
  .amdhsa_group_segment_fixed_size 0
  .amdhsa_kernarg_size 88
  .amdhsa_user_sgpr_count 2
  .amdhsa_user_sgpr_kernarg_segment_ptr 1
  .amdhsa_system_sgpr_workgroup_id_x 1
.end_amdhsa_kernel
"""
    open(dst, "w").write(s.replace(line, main + "\n" + spin) + code)
if __name__ == "__main__":
    src = sys.argv[1]
    names = open(src + ".stamps").read().split()
    make(src, "cal_0.s", 0, 0, mult=0)
    for n, nm in enumerate(sys.argv[2:]):
        make(src, f"cal_{n+1}.s", 0, names.index(nm))
```

```python
import re

_REG = re.compile(r"(?<![\w.])([vas])(?:(\d+)\b|\[(\d+):(\d+)\])")
TRANS = ("v_exp_f32", "v_log_f32", "v_rcp_f32", "v_rsq_f32", "v_sqrt_f32", "v_sin_f32", "v_cos_f32")
PASSES = {"v_mfma_f32_32x32x16_bf16": 8, "v_mfma_f32_16x16x32_bf16": 4, "v_mfma_f32_4x4x4_16b_bf16": 2}


def regs_of(text):
    out = []
    for m in _REG.finditer(text):
        k = m.group(1)
        if m.group(2) is not None:
            out.append((k, int(m.group(2))))
        else:
            out += [(k, i) for i in range(int(m.group(3)), int(m.group(4)) + 1)]
    if re.search(r"\bvcc(_lo|_hi)?\b", text):
        out.append(("x", "vcc"))
    if re.search(r"\bexec(_lo|_hi)?\b", text):
        out.append(("x", "exec"))
    if re.search(r"\bm0\b", text):
        out.append(("x", "m0"))
    return out


def split_ops(s):
    ops, depth, cur = [], 0, ""
    for ch in s:
        if ch in "[(":
            depth += 1
        if ch in "])":
            depth -= 1
        if ch == "," and depth == 0:
            ops.append(cur.strip())
            cur = ""
        else:
            cur += ch
    if cur.strip():
        ops.append(cur.strip())
    return ops


class Ins:
    __slots__ = ("text", "op", "kind", "reads", "writes", "tag", "srcc", "srcab", "dpp", "arg", "wide", "cost")

    def __init__(self, text, tag=None):
        self.text = text.strip()
        self.tag = tag
        self.srcc = self.srcab = ()
        self.dpp = False
        self.wide = False
        self.arg = None
        t = self.text
        if t.endswith(":"):
            self.op, self.kind, self.reads, self.writes = t, "label", (), ()
            return
        if t.startswith("@"):
            parts = t.split(None, 1)
            self.op, self.kind, self.reads, self.writes = parts[0], "pseudo", (), ()
            self.arg = parts[1] if len(parts) > 1 else None
            return
        if t.startswith(";") or t.startswith("."):
            self.op, self.kind, self.reads, self.writes = t, "meta", (), ()
            return
        parts = t.split(None, 1)
        op = self.op = parts[0]
        ops = split_ops(parts[1]) if len(parts) > 1 else []
        R = [regs_of(o) for o in ops]
        flat = lambda l: [r for x in l for r in x]
        base = re.sub(r"_(e32|e64|dpp|sdwa)$", "", op)
        if op.startswith("v_mfma"):
            self.kind = "mfma"
            self.writes, self.reads = R[0], flat(R[1:])
            self.srcab, self.srcc = R[1] + R[2], R[3]
        elif op.startswith("v_"):
            self.kind = "trans" if base in TRANS else "valu"
            self.dpp = op.endswith("_dpp")
            if base.startswith("v_permlane"):
                self.writes, self.reads = R[0] + R[1], R[0] + R[1]
            elif base in ("v_add_co_u32", "v_sub_co_u32", "v_addc_co_u32", "v_subb_co_u32"):
                self.writes, self.reads = R[0] + R[1], flat(R[2:])
            else:
                self.writes, self.reads = R[0], flat(R[1:])
                if base in ("v_fmac_f32", "v_dot2c_f32_bf16") or self.dpp or op.endswith("_sdwa") or base == "v_writelane_b32":
                    self.reads = self.reads + R[0]
            if base == "v_cndmask_b32" and len(ops) == 3:
                self.reads = self.reads + [("x", "vcc")]
        elif op.startswith("ds_read"):
            self.kind = "ds"
            self.writes, self.reads = R[0], flat(R[1:])
        elif op.startswith("ds_"):
            self.kind = "ds"
            self.writes, self.reads = [], flat(R)
        elif op.startswith("buffer_load") or op.startswith("global_load"):
            self.kind = "vm"
            if re.search(r"\blds\b", t):
                self.writes, self.reads = [], flat(R) + [("x", "m0")]
            else:
                self.writes, self.reads = R[0], flat(R[1:])
        elif op.startswith("buffer_store") or op.startswith("global_store"):
            self.kind = "vm"
            self.writes, self.reads = [], flat(R)
            self.wide = op.endswith("x4") or op.endswith("x3")
            self.arg = R[0] if op.startswith("buffer") else R[1]
        elif op.startswith("s_load") or op in ("s_memtime", "s_memrealtime"):
            self.kind = "smem"
            self.writes, self.reads = R[0], flat(R[1:])
        elif op.startswith("s_cmp") or op.startswith("s_bitcmp"):
            self.kind = "salu"
            self.writes, self.reads = [], flat(R)
        elif op in ("s_waitcnt", "s_barrier", "s_nop", "s_endpgm", "s_sleep", "s_setprio") or op.startswith("s_cbranch") or op == "s_branch":
            self.kind = "ctl"
            self.writes, self.reads = [], []
        elif op.startswith("s_"):
            self.kind = "salu"
            self.writes, self.reads = R[0], flat(R[1:])
            if "saveexec" in op:
                self.writes = self.writes + [("x", "exec")]
            if op in ("s_addk_i32", "s_mulk_i32"):
                self.reads = self.reads + R[0]
        else:
            raise ValueError("unknown instruction: " + t)


class Prog(list):
    def __call__(self, text, tag=None):
        for line in text.split("\n"):
            line = line.strip()
            if line:
                self.append(Ins(line, tag))
        return self

    def waitvm(self, tag):
        self.append(Ins("@waitvm " + tag))

    def waitlgkm(self, tag):
        self.append(Ins("@waitlgkm " + tag))


def insert_waits(prog):
    out = Prog()
    vm, lg = [], []
    seen = set()
    for ins in prog:
        need_vm = need_lg = None
        if ins.kind == "pseudo":
            if ins.op == "@waitvm":
                assert ins.arg in seen, "unknown tag " + ins.arg
                idx = [i for i, o in enumerate(vm) if o[1] == ins.arg]
                if idx:
                    need_vm = len(vm) - 1 - idx[-1]
            elif ins.op == "@waitlgkm":
                assert ins.arg in seen, "unknown tag " + ins.arg
                idx = [i for i, o in enumerate(lg) if o[1] == ins.arg]
                if idx:
                    need_lg = len(lg) - 1 - idx[-1]
            elif ins.op == "@vm_empty":
                vm = []
                continue
            elif ins.op == "@lgkm_empty":
                lg = []
                continue
            elif ins.op == "@raw_begin" or ins.op == "@raw_end":
                out.append(ins)
                continue
            else:
                out.append(ins)
                continue
        else:
            touched = set(ins.reads) | set(ins.writes)
            if touched:
                for i, o in enumerate(vm):
                    if touched & o[0]:
                        need_vm = len(vm) - 1 - i
                for i, o in enumerate(lg):
                    if touched & o[0]:
                        need_lg = len(lg) - 1 - i
        if need_lg is not None and any(o[2] for o in lg):
            need_lg = 0
        if need_vm is not None or need_lg is not None:
            w = []
            if need_vm is not None:
                need_vm = min(need_vm, 62)
                w.append(f"vmcnt({need_vm})")
                vm = vm[len(vm) - need_vm:] if need_vm else []
            if need_lg is not None:
                need_lg = min(need_lg, 14)
                w.append(f"lgkmcnt({need_lg})")
                lg = lg[len(lg) - need_lg:] if need_lg else []
            out.append(Ins("s_waitcnt " + " ".join(w)))
        if ins.kind == "pseudo":
            continue
        if ins.op == "s_waitcnt":
            m = re.search(r"vmcnt\((\d+)\)", ins.text)
            if m and ins.tag != "cond":
                n = int(m.group(1))
                vm = vm[len(vm) - n:] if n and n < len(vm) else ([] if n == 0 else vm)
            m = re.search(r"lgkmcnt\((\d+)\)", ins.text)
            if m and ins.tag != "cond":
                n = int(m.group(1))
                assert n == 0 or not any(o[2] for o in lg)
                lg = lg[len(lg) - n:] if n and n < len(lg) else ([] if n == 0 else lg)
        if ins.tag and ins.tag != "cond":
            seen.add(ins.tag)
        if ins.tag != "cond":
            if ins.kind == "vm":
                vm.append((set(ins.writes), ins.tag, False))
            elif ins.kind == "ds":
                lg.append((set(ins.writes), ins.tag, False))
            elif ins.kind == "smem":
                lg.append((set(ins.writes), ins.tag, True))
        out.append(ins)
    return out


def _states(ins):
    if ins.kind in ("label", "pseudo", "meta"):
        return 0
    if ins.op == "s_nop":
        return int(ins.text.split()[1], 0) + 1
    return 1


def _need(prev, cur):
    n = 0
    pw, cr, cw = set(prev.writes), set(cur.reads), set(cur.writes)
    isv = lambda s: {r for r in s if r[0] in "va"}
    iss = lambda s: {r for r in s if r[0] == "s" or r == ("x", "vcc")}
    pvalu = prev.kind in ("valu", "trans")
    cvalu = cur.kind in ("valu", "trans")
    if pvalu:
        w = isv(pw)
        if cur.kind == "mfma" and w & cr:
            n = max(n, 2)
        if cvalu and w & cr:
            if cur.dpp or cur.op.startswith("v_permlane"):
                n = max(n, 2)
            if cur.op.startswith("v_readlane") or cur.op.startswith("v_readfirstlane"):
                n = max(n, 1)
            if prev.kind == "trans" and cur.kind != "trans":
                n = max(n, 1)
            if prev.op.endswith("_sdwa") or "op_sel" in prev.text:
                n = max(n, 1)
        s = iss(pw)
        if s & cr:
            if cvalu:
                n = max(n, 4 if cur.op.startswith(("v_readlane", "v_writelane")) else 2)
            if cur.kind == "vm":
                n = max(n, 5)
            if cur.kind in ("salu", "smem"):
                n = max(n, 1)
        if ("x", "exec") in pw:
            n = max(n, 5)
    if prev.kind == "mfma":
        p = PASSES[prev.op]
        i = {2: 0, 4: 1, 8: 2}[p]
        if cur.kind == "mfma":
            if pw & set(cur.srcab):
                n = max(n, (5, 8, 12)[i])
            if pw & set(cur.srcc):
                same = list(prev.writes) == list(cur.srcc) and prev.op == cur.op
                n = max(n, (2, 0, 0)[i] if same else (4, 6, 10)[i])
            elif pw & cw:
                n = max(n, (4, 6, 10)[i])
        elif cur.kind in ("valu", "trans", "vm", "ds") and pw & (cr | cw):
            n = max(n, (5, 8, 12)[i])
        if cvalu and set(prev.srcc) & cw:
            n = max(n, (1, 3, 7)[i])
    if prev.kind == "vm" and prev.wide and set(prev.arg) & cw:
        n = max(n, 2)
    if prev.kind == "salu" and ("x", "m0") in pw and cur.kind == "vm" and ("x", "m0") in cr:
        n = max(n, 1)
    return n


def insert_nops(prog, window=14):
    out = Prog()
    for ins in prog:
        if ins.kind not in ("label", "pseudo", "meta", "ctl"):
            dist, need = 0, 0
            for prev in reversed(out):
                if dist >= window:
                    break
                if prev.kind not in ("label", "pseudo", "meta", "ctl"):
                    need = max(need, _need(prev, ins) - dist)
                dist += _states(prev)
            while need > 0:
                k = min(need, 16)
                out.append(Ins(f"s_nop {k-1}"))
                need -= k
        out.append(ins)
    return out


def render(prog):
    lines = []
    for ins in prog:
        if ins.kind == "pseudo":
            continue
        lines.append(ins.text if ins.kind == "label" else "    " + ins.text)
    return "\n".join(lines)


class RegFile:
    def __init__(self, kind, n, first=0):
        self.kind, self.n = kind, n
        self.used = [i < first for i in range(n)]
        self.high = first

    def alloc(self, cnt=1, align=None):
        align = align or (1 if cnt == 1 else 2 if cnt == 2 else 4)
        starts = list(range(0, self.n - cnt + 1, align))
        if self.kind == "v" and cnt < 8:
            starts.reverse()
        for b in starts:
            if not any(self.used[b:b + cnt]):
                for i in range(b, b + cnt):
                    self.used[i] = True
                self.high = max(self.high, sum(self.used))
                return Reg(self.kind, b, cnt, self)
        raise RuntimeError(f"out of {self.kind} registers (need {cnt})")


class Reg:
    def __init__(self, kind, base, cnt, rf=None):
        self.kind, self.base, self.cnt, self.rf = kind, base, cnt, rf

    def __str__(self):
        return f"{self.kind}{self.base}" if self.cnt == 1 else f"{self.kind}[{self.base}:{self.base+self.cnt-1}]"

    __repr__ = __str__

    def __getitem__(self, i):
        if isinstance(i, slice):
            a, b = i.start or 0, self.cnt if i.stop is None else i.stop
            assert 0 <= a < b <= self.cnt, (a, b, self.cnt)
            return Reg(self.kind, self.base + a, b - a)
        assert 0 <= i < self.cnt, (i, self.cnt)
        return Reg(self.kind, self.base + i, 1)

    def free(self):
        for i in range(self.base, self.base + self.cnt):
            assert self.rf.used[i]
            self.rf.used[i] = False


def interleave(main, fill, per):
    out = Prog()
    fi, acc = 0, 0.0
    for ins in main:
        out.append(ins)
        if ins.kind == "mfma" and PASSES[ins.op] == 8:
            acc += per
            while acc >= 1.0 and fi < len(fill):
                f = fill[fi]
                out.append(f)
                fi += 1
                if f.kind not in ("pseudo", "meta"):
                    acc -= 2.0 if f.kind == "trans" else 1.0
    out.extend(fill[fi:])
    return out
```

```python
import sys
from collections import deque
from contextlib import contextmanager
from asmgen import *
from gen import (NAME, MF32, MF16, MF4, WS_EPOCH, WS_P1, WS_P2, WS_RB, RB_SIZE, RB_O, RB_H, RB_ACT, RB_PART, RB_ST2, RB_FL,
                 FL_SAFE, WS_STAMP, L_WK, L_WV, L_WQ, L_XS, LOG2E, TAG_STEP)

L_CSX, L_PHI, L_VT, L_CSQ, L_KVA = 0, 4096, 20480, 28672, 29696
L_W1C, L_RED, L_W1A, L_W1B, L_OUT = 0, 16384, 32768, 32768, 16384
RB_ST1 = RB_FL + 0x1000


def w2slot(z):
    return L_XS + z * 4096 if z < 16 else L_W1A + (z - 16) * 4096


USE = [(0, ks) for ks in range(7)] + [(i, ks) for i in (1, 2, 3) for ks in range(4)] + [(i, ks) for i in (1, 2, 3) for ks in (4, 5, 6)]
FL_E2, FL_E3, FL_E4A, FL_E4B, FL_E5 = 0, 512, 1024, 1536, 2048


def real(ins):
    return ins.kind not in ("pseudo", "meta", "label")


def big(ins):
    return ins.kind == "mfma" and PASSES[ins.op] == 8


class Gen:
    def __init__(self, stamps=False, opt=None):
        self.P = Prog()
        self.tail = Prog()
        self.V = RegFile("v", 256, first=1)
        self.A = RegFile("a", 256)
        self.S = RegFile("s", 102, first=3)
        self.stamps = stamps
        self.opt = opt or {}
        self.nlabel = 0
        self.stamp_names = []
        self.bgq = deque()
        self.ok = set()

    def o(self, key, default):
        return self.opt.get(key, default)

    def K(self, text, tag=None):
        self.P(text, tag)

    def label(self, base):
        self.nlabel += 1
        return f"L_{base}_{self.nlabel}"

    @contextmanager
    def seg(self):
        old, self.P = self.P, Prog()
        s = self.P
        try:
            yield s
        finally:
            self.P = old

    def emit(self, prog):
        self.P.extend(prog)

    def stamp(self, name):
        if not self.stamps:
            return
        i = len(self.stamp_names)
        self.stamp_names.append(name)
        self.K(f"""s_memrealtime {self.sStamp[0:2]}
        s_memtime {self.sStamp[2:4]}
        s_waitcnt lgkmcnt(0)
        v_writelane_b32 {self.vStamp}, {self.sStamp[0]}, {i}
        v_writelane_b32 {self.vStamp}, {self.sStamp[2]}, {32+i}""")

    def bg_add(self, cond, tag, prog):
        self.bgq.append((cond, tag, prog))

    def bg_pop(self):
        if self.bgq and (self.bgq[0][0] is None or self.bgq[0][0] in self.ok):
            return self.bgq.popleft()[2]
        return None

    def bg(self, n):
        for _ in range(n):
            g = self.bg_pop()
            if g is None:
                return
            self.emit(g)

    def bg_flush(self, tag):
        while any(t == tag for _, t, _ in self.bgq):
            g = self.bg_pop()
            assert g is not None, "precondition of background load not met for " + tag
            self.emit(g)

    def weave(self, main, groups, every=1, start=0, per=1):
        out, n = Prog(), 0
        for ins in main:
            out.append(ins)
            if big(ins):
                if n >= start and (n - start) % every == 0:
                    for _ in range(per):
                        g = self.bg_pop() if groups is None else (groups.pop(0) if groups else None)
                        if g is not None:
                            out.extend(g)
                n += 1
        return out

    def sprinkle(self, main, gap, first=None, limit=99):
        out, n = Prog(), gap - (gap if first is None else first)
        guard = False
        for ins in main:
            out.append(ins)
            if ins.op.startswith("s_cmp") or ("x", "exec") in ins.writes:
                guard = not (("x", "exec") in ins.writes and "-1" in ins.text)
            elif ins.op.startswith("s_cbranch") or ins.op.startswith("s_cselect"):
                guard = False
            if real(ins):
                n += 8 if big(ins) else 4 if ins.kind == "mfma" else 2 if ins.kind in ("trans", "ds") else 1
            if n >= gap and limit > 0 and not guard and ins.tag != "cond":
                g = self.bg_pop()
                if g is not None:
                    out.extend(g)
                    limit -= 1
                    n = 0
        return out

    def dma(self, vaddr, srd, soff, m0, imm=0, tag=None):
        g = Prog()
        if m0 is not None:
            g(f"s_add_u32 m0, {m0[0]}, {m0[1]}")
        so = soff[0]
        if soff[1]:
            g(f"s_add_u32 {self.sBg}, {soff[0]}, {soff[1]}")
            so = self.sBg
        off = f" offset:{imm}" if imm else ""
        g(f"buffer_load_dwordx4 {vaddr}, {srd}, {so} offen{off} lds", tag)
        return g

    def trread(self, dst, vaddr, off0, off1, tag=None):
        assert off1 < 65536 and off0 < 65536
        self.K(f"ds_read_b64_tr_b16 {dst[0:2]}, {vaddr} offset:{off0}", tag)
        self.K(f"ds_read_b64_tr_b16 {dst[2:4]}, {vaddr} offset:{off1}", tag)

    def half_add2(self, x, y, tx, ty):
        self.K(f"""v_mov_b32 {tx}, {x}
        v_mov_b32 {ty}, {y}
        v_permlane32_swap_b32 {x}, {tx}
        v_permlane32_swap_b32 {y}, {ty}
        v_add_f32 {x}, {x}, {tx}
        v_add_f32 {y}, {y}, {ty}""")

    def softmax2(self, Ps, outs, vC2, t):
        K = self.K
        ts = [t[0:4], t[4:8]]
        for step in range(4):
            for Pr, tt in zip(Ps, ts):
                if step == 0:
                    K(f"v_max3_f32 {tt[0]}, {Pr[0]}, {Pr[1]}, {Pr[2]}\nv_max3_f32 {tt[1]}, {Pr[3]}, {Pr[4]}, {Pr[5]}")
                elif step < 3:
                    b = 2 + 4 * step
                    K(f"v_max3_f32 {tt[0]}, {tt[0]}, {Pr[b]}, {Pr[b+1]}\nv_max3_f32 {tt[1]}, {tt[1]}, {Pr[b+2]}, {Pr[b+3]}")
                else:
                    K(f"v_max3_f32 {tt[0]}, {tt[0]}, {Pr[14]}, {Pr[15]}")
        for Pr, tt in zip(Ps, ts):
            K(f"v_max_f32 {tt[0]}, {tt[0]}, {tt[1]}")
        for Pr, tt in zip(Ps, ts):
            K(f"v_mul_f32 {tt[0]}, {tt[0]}, {vC2[0]}")
        for Pr, tt in zip(Ps, ts):
            for r in range(0, 16, 2):
                K(f"v_pk_fma_f32 {Pr[r:r+2]}, {Pr[r:r+2]}, {vC2}, {tt[0:2]} op_sel_hi:[1,0,0] neg_lo:[0,0,1] neg_hi:[0,0,1]")
        for Pr, tt in zip(Ps, ts):
            for r in range(16):
                K(f"v_exp_f32 {Pr[r]}, {Pr[r]}")
        for Pr, tt in zip(Ps, ts):
            K(f"v_pk_add_f32 {tt[0:2]}, {Pr[0:2]}, {Pr[2:4]}\nv_pk_add_f32 {tt[2:4]}, {Pr[4:6]}, {Pr[6:8]}")
        for b in (8, 12):
            for Pr, tt in zip(Ps, ts):
                K(f"v_pk_add_f32 {tt[0:2]}, {tt[0:2]}, {Pr[b:b+2]}\nv_pk_add_f32 {tt[2:4]}, {tt[2:4]}, {Pr[b+2:b+4]}")
        for Pr, tt in zip(Ps, ts):
            K(f"v_pk_add_f32 {tt[0:2]}, {tt[0:2]}, {tt[2:4]}")
        for Pr, tt in zip(Ps, ts):
            K(f"v_add_f32 {tt[0]}, {tt[0]}, {tt[1]}")
        for Pr, tt in zip(Ps, ts):
            K(f"v_rcp_f32 {tt[0]}, {tt[0]}")
        for Pr, tt, out in zip(Ps, ts, outs):
            for r in range(0, 16, 2):
                K(f"v_pk_mul_f32 {Pr[r:r+2]}, {Pr[r:r+2]}, {tt[0:2]} op_sel_hi:[1,0]")
            for r in range(8):
                K(f"v_cvt_pk_bf16_f32 {out[r]}, {Pr[2*r]}, {Pr[2*r+1]}")

    def hilo_pair(self, dst, x, tmp):
        self.K(f"""v_cvt_pk_bf16_f32 {tmp}, {x}, {x}
        v_and_b32 {tmp}, 0xffff0000, {tmp}
        v_sub_f32 {tmp}, {x}, {tmp}
        v_cvt_pk_bf16_f32 {dst}, {x}, {tmp}""")

    def set_flag(self, sAddr, off, safe=False):
        if safe:
            self.K(f"buffer_store_dword {self.vTag}, {self.vSafe}, {self.sWS}, {sAddr} offen offset:{off} sc1")
        else:
            self.K(f"buffer_store_dword {self.vTag}, {self.vZero}, {self.sWS}, {sAddr} offen offset:{off}")

    def poll_issue(self, vA, off, tag):
        self.K(f"buffer_load_dword {self.vPl[0]}, {vA}, {self.sWS}, {self.sFl} offen offset:{off} sc1", tag)

    def poll_check(self, vA, off, pending):
        K = self.K
        Ls, L0, L1, Lb = self.label("slow"), self.label("pf"), self.label("ps"), self.label("back")
        t0, t1, t2 = self.vPl[0], self.vPl[1], self.vPl[2]
        K(f"""v_cmp_ne_u32 vcc, {self.sTag}, {t0}
        s_cbranch_vccnz {Ls}
        {Lb}:""")
        with self.seg() as s:
            K(f"""{Ls}:
            s_mov_b32 {self.sCnt}, 24
            {L0}:
            buffer_load_dword {t0}, {vA}, {self.sWS}, {self.sFl} offen offset:{off} sc1
            s_waitcnt vmcnt(0)
            v_cmp_ne_u32 vcc, {self.sTag}, {t0}
            s_cbranch_vccz {Lb}
            s_sub_u32 {self.sCnt}, {self.sCnt}, 1
            s_cbranch_scc0 {L0}""")
            for sA, o in pending:
                self.set_flag(sA, o, safe=True)
            K(f"""v_add_u32 {t2}, {FL_SAFE}, {vA}
            s_mov_b32 {self.sCnt}, 40000
            {L1}:
            buffer_load_dword {t0}, {vA}, {self.sWS}, {self.sFl} offen offset:{off} sc1
            buffer_load_dword {t1}, {t2}, {self.sWS}, {self.sFl} offen offset:{off} sc1
            s_waitcnt vmcnt(0)
            v_cmp_ne_u32 vcc, {self.sTag}, {t0}
            v_cmp_ne_u32 {self.sPair}, {self.sTag}, {t1}
            s_and_b64 vcc, vcc, {self.sPair}
            s_cbranch_scc0 {Lb}
            s_sub_u32 {self.sCnt}, {self.sCnt}, 1
            s_cbranch_scc0 {L1}
            s_branch {Lb}""")
        self.tail.extend(s)

    def tag_check(self, loads, tags):
        K = self.K
        Ls, L0, Lb = self.label("slow"), self.label("tl"), self.label("back")
        cmp_ = f"v_cmp_ne_u32 vcc, {self.sTag}, {tags[0]}"
        if len(tags) == 2:
            cmp_ += f"\nv_cmp_ne_u32 {self.sPair}, {self.sTag}, {tags[1]}\ns_or_b64 vcc, vcc, {self.sPair}"
        bad, good = ("s_cbranch_scc1", "s_cbranch_scc0") if len(tags) == 2 else ("s_cbranch_vccnz", "s_cbranch_vccz")
        K(f"{cmp_}\n{bad} {Ls}\n{Lb}:")
        with self.seg() as s:
            K(f"""{Ls}:
            s_mov_b32 {self.sCnt}, 40000
            {L0}:
            {loads}
            s_waitcnt vmcnt(0)
            {cmp_}
            {good} {Lb}
            s_sub_u32 {self.sCnt}, {self.sCnt}, 1
            s_cbranch_scc0 {L0}
            s_branch {Lb}""")
        self.tail.extend(s)

    def ln_scalars(self, vSum, vSq, vRstd, vSd, t, t2):
        K = self.K
        K(f"""v_mul_f32 {vSum}, 0xbb000000, {vSum}
        v_mul_f32 {vSq}, 0x3b000000, {vSq}
        v_cvt_pk_bf16_f32 {t}, {vSum}, {vSum}
        v_fma_f32 {vSq}, -{vSum}, {vSum}, {vSq}
        v_and_b32 {t2}, 0xffff0000, {t}
        v_max_f32 {vSq}, 0, {vSq}
        v_sub_f32 {t2}, {vSum}, {t2}
        v_add_f32 {vSq}, 0x3727c5ac, {vSq}
        v_cvt_pk_bf16_f32 {t2}, {t2}, {t2}
        v_rsq_f32 {vRstd}, {vSq}
        v_cndmask_b32 {self.augB[0]}, {t2}, {t}, {self.sLo}""")
        if vSd is not None:
            K(f"v_mul_f32 {vSd}, {vSq}, {vRstd}")

    def pair_addr(self, dst, pitch):
        K, V = self.K, self.V
        t, t2, t3 = V.alloc(), V.alloc(), V.alloc()
        K(f"""v_lshrrev_b32 {t}, 3, {self.vL}
        v_bfe_u32 {t3}, {self.vL}, 2, 1
        v_xor_b32 {t2}, {self.vH16}, {t3}
        v_lshl_add_u32 {t2}, {t2}, 2, {self.vC}
        v_mul_u32_u24 {t}, {pitch}, {t}
        v_lshl_add_u32 {dst[0]}, {t2}, 4, {t}""")
        for u in range(1, 4):
            K(f"v_add_u32 {dst[u]}, {u*(8*pitch - 1024)}, {dst[0]}")
        t.free(), t2.free(), t3.free()

    def pair_read_addr(self, dst, ct, base):
        K, V = self.K, self.V
        t, t2 = V.alloc(), V.alloc()
        K(f"""v_lshl_add_u32 {t}, {self.vG}, 2, {self.vR}
        v_lshlrev_b32 {t}, 7, {t}
        v_lshrrev_b32 {t2}, 1, {self.vR}
        v_xor_b32 {t2}, {ct}, {t2}
        v_lshl_add_u32 {t2}, {t2}, 1, {self.vH16}
        v_lshl_add_u32 {t2}, {t2}, 2, {self.vC}
        v_lshl_add_u32 {dst}, {t2}, 3, {t}
        v_add_u32 {dst}, {base}, {dst}""")
        t.free(), t2.free()

    def selector(self, dst, natural):
        K, V = self.K, self.V
        w, q, one, h = V.alloc(), V.alloc(), V.alloc(), V.alloc()
        K(f"""v_and_b32 {w}, 1, {self.vN}
        v_lshlrev_b32 {w}, 4, {w}
        v_mov_b32 {one}, 0x3f80
        v_lshlrev_b32 {one}, {w}, {one}""")
        if natural:
            K(f"""v_lshrrev_b32 {w}, 1, {self.vN}
            v_lshlrev_b32 {q}, 2, {self.vG}
            v_sub_u32 {q}, {w}, {q}""")
        else:
            K(f"""v_lshrrev_b32 {q}, 3, {self.vN}
            v_bfe_u32 {w}, {self.vN}, 1, 1
            v_lshl_add_u32 {q}, {q}, 1, {w}
            v_bfe_u32 {h}, {self.vN}, 2, 1
            v_cmp_eq_u32 vcc, {h}, {self.vG}
            v_cndmask_b32 {q}, -1, {q}, vcc""")
        step = 8 if natural else 4
        for fr in range(2):
            for r in range(4):
                m = "vcc" if r % 2 else self.sPair
                K(f"v_cmp_eq_u32 {m}, {step*fr + r}, {q}")
                if r % 2:
                    K(f"""v_cndmask_b32 {dst[4*fr+r-1]}, 0, {one}, {self.sPair}
                    v_cndmask_b32 {dst[4*fr+r]}, 0, {one}, vcc""")
        w.free(), q.free(), one.free(), h.free()

    def chunk_groups(self, i):
        gk = self.dma(self.vWa, self.sW, (self.sChW[i], 1024), (self.sV10, L_WK + i * 4096), tag=f"c{i}")
        gv = self.dma(self.vWa, self.sW, (self.sChW[i], 2048), (self.sV10, L_WV + i * 4096), tag=f"c{i}")
        gx = [self.dma(self.vXa[u], self.sX, (self.sChX[i], 0), (self.sM0x, (i % 4) * 4096) if u == 0 else None, imm=u * 1024, tag=f"c{i}")
              for u in range(4)]
        return [gk, gv] + gx

    def chunk_offsets(self, i):
        self.K(f"""s_add_u32 {self.sT1}, {self.sRho}, {i}
        s_and_b32 {self.sT1}, {self.sT1}, 7
        s_lshl_b32 {self.sT2}, {self.sT1}, 7
        s_mul_i32 {self.sT1}, {self.sT1}, {64*3072}
        s_add_u32 {self.sChX[i]}, {self.sT2}, {self.sXrow}
        s_add_u32 {self.sChW[i]}, {self.sT1}, {self.sWb}""")

    def prologue(self):
        K, V, S = self.K, self.V, self.S
        self.sX, self.sW, self.sPHI, self.sWO = (S.alloc(4) for _ in range(4))
        self.sW1, self.sB1, self.sW2, self.sOUT, self.sWS = (S.alloc(4) for _ in range(5))
        K("s_cmp_ge_u32 s2, 256\ns_cbranch_scc1 L_end")
        K(f"s_load_dwordx2 {self.sX[0:2]}, s[0:1], 0\ns_load_dwordx2 {self.sW[0:2]}, s[0:1], 8\ns_load_dwordx2 {self.sWS[0:2]}, s[0:1], 80")
        if self.stamps:
            self.sStamp = S.alloc(4)
            self.vStamp = V.alloc()
            K(f"v_mov_b32 {self.vStamp}, 0")
        self.stamp("start")
        names = "sV sT sRB sRho sWb sT0 sT1 sT2 sT3 sBg sCnt sTag sRBB sFl sXrow sM0x sV10 sIres sG sQ sR sKH".split()
        for nm in names:
            setattr(self, nm, S.alloc())
        self.sPair, self.sLo = S.alloc(2), S.alloc(2)
        self.sChW, self.sChX = S.alloc(8, 1), S.alloc(8, 1)
        self.vL, self.vN, self.vG = V.alloc(), V.alloc(), V.alloc()
        self.vXa, self.vWa, self.vC = V.alloc(4), V.alloc(), V.alloc()
        t, t2, t3 = V.alloc(), V.alloc(), V.alloc()
        self.srow = V.alloc(8)
        junk = self.junk = V.alloc(2)
        K(f"""v_lshrrev_b32 {t}, 6, v0
        v_and_b32 {self.vL}, 63, v0
        v_readfirstlane_b32 {self.sV}, {t}
        s_bfe_u32 {self.sT}, s2, 0x40003
        s_and_b32 {self.sT0}, s2, 7
        s_lshr_b32 {self.sT1}, s2, 7
        s_lshl1_add_u32 {self.sRB}, {self.sT0}, {self.sT1}
        s_and_b32 {self.sRho}, {self.sT}, 1
        s_lshl1_add_u32 {self.sRho}, {self.sRho}, {self.sT1}
        s_lshr_b32 {self.sT1}, {self.sT}, 1
        s_lshl1_add_u32 {self.sRho}, {self.sRho}, {self.sT1}
        s_add_u32 {self.sRho}, {self.sRho}, {self.sT0}
        s_and_b32 {self.sRho}, {self.sRho}, {self.o('rhomask', 7)}
        s_lshl2_add_u32 {self.sXrow}, {self.sRB}, {self.sV}
        s_lshl_b32 {self.sXrow}, {self.sXrow}, 15
        s_lshl_b32 {self.sM0x}, {self.sV}, 14
        s_add_u32 {self.sM0x}, {self.sM0x}, {L_XS}
        s_lshl_b32 {self.sV10}, {self.sV}, 10
        s_mul_i32 {self.sWb}, {self.sV}, {16*3072}
        s_lshl_b32 {self.sT1}, {self.sT}, 6
        s_add_u32 {self.sWb}, {self.sWb}, {self.sT1}
        s_mov_b32 {self.sX[2]}, 2097152
        s_mov_b32 {self.sX[3]}, 0x20000
        s_mov_b32 {self.sW[2]}, 1572864
        s_mov_b32 {self.sW[3]}, 0x20000
        v_and_b32 {self.vN}, 31, v0
        v_lshrrev_b32 {self.vG}, 5, {self.vL}
        v_lshrrev_b32 {t}, 2, {self.vL}
        v_mul_u32_u24 {t}, 3072, {t}
        v_and_b32 {self.vC}, 3, {self.vL}
        v_lshl_add_u32 {self.vWa}, {self.vC}, 4, {t}
        v_lshrrev_b32 {t}, 3, {self.vL}
        v_and_b32 {t2}, 7, {self.vL}
        v_lshrrev_b32 {t3}, 1, {t}
        v_xor_b32 {t2}, {t2}, {t3}
        v_lshlrev_b32 {t}, 10, {t}
        v_lshl_add_u32 {self.vXa[0]}, {t2}, 4, {t}
        v_xor_b32 {t2}, 4, {t2}
        v_lshl_add_u32 {self.vXa[1]}, {t2}, 4, {t}
        v_add_u32 {self.vXa[2]}, {2*7168}, {self.vXa[0]}
        v_add_u32 {self.vXa[3]}, {3*7168}, {self.vXa[1]}
        v_add_u32 {self.vXa[1]}, {7168}, {self.vXa[1]}
        v_lshlrev_b32 {t}, 10, {self.vG}
        v_lshl_add_u32 {t}, {self.vN}, 4, {t}
        s_lshl4_add_u32 {self.sT3}, {self.sRB}, {self.sT}
        s_lshl2_add_u32 {self.sT3}, {self.sT3}, {self.sV}
        s_lshl_b32 {self.sT3}, {self.sT3}, 11""")
        self.chunk_offsets(0)
        K(f"""s_waitcnt lgkmcnt(0)
        buffer_load_dwordx4 {self.srow[0:4]}, {t}, {self.sX}, {self.sT3} offen
        buffer_load_dwordx4 {self.srow[4:8]}, {t}, {self.sX}, {self.sT3} offen offset:512""")
        if self.o("codepf", True):
            a = V.alloc(2)
            K(f"""s_getpc_b64 {self.sPair}
            L_pc:
            s_lshr_b32 {self.sT1}, s2, 3
            s_lshl2_add_u32 {self.sT1}, {self.sT1}, {self.sV}
            s_lshl_b32 {self.sT1}, {self.sT1}, 1
            v_and_b32 {t}, 1, v0
            v_add_lshl_u32 {t}, {t}, {self.sT1}, 7
            v_min_u32 {a[0]}, L_end-L_pc, {t}
            v_mov_b32 {a[1]}, 0
            v_lshl_add_u64 {a}, {a}, 0, {self.sPair}
            s_mov_b64 exec, 3
            global_load_dword {junk[0]}, {a}, off
            s_mov_b64 exec, -1""")
            a.free()
        for g in self.chunk_groups(0):
            self.emit(g)
        for srd, off in ((self.sPHI, 16), (self.sWO, 24), (self.sW1, 40), (self.sB1, 48), (self.sW2, 56), (self.sOUT, 64)):
            K(f"s_load_dwordx2 {srd[0:2]}, s[0:1], {off}")
        self.sE = S.alloc()
        K(f"s_load_dword {self.sE}, {self.sWS[0:2]}, {WS_EPOCH}")
        self.chunk_offsets(1)
        self.chunk_offsets(2)
        self.vL16, self.vH16, self.vR = V.alloc(), V.alloc(), V.alloc()
        K(f"""v_lshlrev_b32 {self.vL16}, 4, {self.vL}
        v_bfe_u32 {self.vH16}, {self.vL}, 4, 1
        v_bfe_u32 {self.vR}, {self.vL}, 2, 2
        s_sub_u32 {self.sIres}, {self.sT}, {self.sRho}
        s_and_b32 {self.sIres}, {self.sIres}, 7
        s_lshr_b32 {self.sR}, {self.sT}, 3
        s_and_b32 {self.sT0}, {self.sV}, 1
        s_lshl1_add_u32 {self.sR}, {self.sR}, {self.sT0}
        s_lshr_b32 {self.sKH}, {self.sV}, 1""")
        t.free(), t2.free(), t3.free()

    def setup_misc(self):
        K, V, S = self.K, self.V, self.S
        for srd, size in ((self.sWS, 268435456), (self.sPHI, 16384), (self.sWO, 524288), (self.sW1, 1835008), (self.sB1, 3584),
                          (self.sW2, 1835008), (self.sOUT, 2097152)):
            K(f"s_mov_b32 {srd[2]}, {size}\ns_mov_b32 {srd[3]}, 0x20000")
        self.vZero, self.vTag, self.vSafe = V.alloc(), V.alloc(), V.alloc()
        self.vPl = V.alloc(3, 1)
        t = V.alloc()
        K(f"""v_mov_b32 {self.vZero}, 0
        v_mov_b32 {self.vSafe}, {FL_SAFE}
        s_mov_b32 {self.sLo[0]}, -1
        s_mov_b32 {self.sLo[1]}, 0
        s_mul_i32 {self.sRBB}, {self.sRB}, {RB_SIZE}
        s_add_u32 {self.sRBB}, {self.sRBB}, {WS_RB}
        s_add_u32 {self.sFl}, {self.sRBB}, {RB_FL}
        s_lshr_b32 {self.sG}, {self.sT}, 2
        s_and_b32 {self.sQ}, {self.sT}, 3
        s_lshl_b32 {self.sT1}, {self.sT}, 10
        v_lshlrev_b32 {t}, 7, {self.vN}
        s_add_u32 {self.sTag}, {self.sE}, {TAG_STEP}
        v_mov_b32 {self.vTag}, {self.sTag}""")
        self.emit(self.dma(self.vL16, self.sPHI, (self.sT1, 0), (self.sV10, L_WQ), tag="phi"))
        K(f"""s_mov_b64 exec, 0xfffff
        buffer_load_dword {self.junk[1]}, {t}, {self.sWS}, {self.sFl} offen sc1
        s_mov_b64 exec, -1""")
        t.free(), self.sE.free(), self.sPHI.free()

    def row_stats(self):
        K, V = self.K, self.V
        g = V.alloc(4)
        a, b, one = V.alloc(), V.alloc(), V.alloc()
        x = self.srow
        K(f"""v_mov_b32 {one}, 0x3f803f80
        v_dot2_f32_bf16 {g[0]}, {x[0]}, {one}, 0
        v_dot2_f32_bf16 {g[1]}, {x[0]}, {x[0]}, 0
        v_dot2_f32_bf16 {a}, {x[1]}, {one}, 0
        v_dot2_f32_bf16 {b}, {x[1]}, {x[1]}, 0""")
        for r in range(2, 8, 2):
            K(f"""v_dot2_f32_bf16 {g[0]}, {x[r]}, {one}, {g[0]}
            v_dot2_f32_bf16 {g[1]}, {x[r]}, {x[r]}, {g[1]}
            v_dot2_f32_bf16 {a}, {x[r+1]}, {one}, {a}
            v_dot2_f32_bf16 {b}, {x[r+1]}, {x[r+1]}, {b}""")
        K(f"""s_nop 2
        v_add_f32 {g[0]}, {g[0]}, {a}
        v_add_f32 {g[1]}, {g[1]}, {b}
        v_mov_b32 {g[2]}, 0
        v_mov_b32 {g[3]}, {self.sTag}""")
        for ror in (1, 2, 4, 8):
            K(f"""v_add_f32_dpp {g[0]}, {g[0]}, {g[0]} row_ror:{ror} row_mask:0xf bank_mask:0xf
            v_add_f32_dpp {g[1]}, {g[1]}, {g[1]} row_ror:{ror} row_mask:0xf bank_mask:0xf""")
        K(f"""v_mov_b32 {a}, {g[0]}
        v_mov_b32 {b}, {g[1]}
        v_permlane16_swap_b32 {g[0]}, {a}
        v_permlane16_swap_b32 {g[1]}, {b}
        v_add_f32 {g[0]}, {g[0]}, {a}
        v_add_f32 {g[1]}, {g[1]}, {b}
        s_lshl2_add_u32 {self.sT0}, {self.sT}, {self.sV}
        s_lshl_b32 {self.sT0}, {self.sT0}, 5
        s_add_u32 {self.sT0}, {self.sT0}, {self.sRBB}
        s_add_u32 {self.sT0}, {self.sT0}, {RB_ST1}
        v_lshlrev_b32 {a}, 4, {self.vG}
        s_mov_b32 exec_lo, 1
        s_mov_b32 exec_hi, 1
        buffer_store_dwordx4 {g}, {a}, {self.sWS}, {self.sT0} offen sc1
        s_mov_b64 exec, -1""")
        for r in (g, a, b, one, x):
            r.free()

    def setup_streams(self):
        K, V, S = self.K, self.V, self.S
        for i in range(8):
            self.bg_add("phi_read", "wq", self.dma(self.vWa, self.sW, (self.sChW[i], 0), (self.sV10, L_WQ + i * 4096), tag="wq"))
        self.vWo = V.alloc(4)
        self.pair_addr(self.vWo, 1024)
        self.sWo = S.alloc()
        K(f"""s_and_b32 {self.sT0}, {self.sT}, 7
        s_lshl_b32 {self.sT0}, {self.sT0}, 7
        s_lshl_b32 {self.sT1}, {self.sV}, 17
        s_add_u32 {self.sWo}, {self.sT0}, {self.sT1}""")
        wo = [("x_done", "wo", self.dma(self.vWo[u], self.sWO, (self.sWo, b * 32768), (self.sM0x, b * 4096), imm=u * 1024, tag="wo"))
              for b in range(4) for u in range(4)]
        self.vW1a = V.alloc(4)
        self.pair_addr(self.vW1a, 3584)
        self.vW1b, self.vW1c = V.alloc(), V.alloc()
        t, t2 = V.alloc(), V.alloc()
        K(f"""v_lshrrev_b32 {t}, 2, {self.vL}
        v_mul_u32_u24 {t}, 3584, {t}
        v_lshl_add_u32 {self.vW1b}, {self.vC}, 4, {t}
        v_lshrrev_b32 {t}, 1, {self.vL}
        v_mul_u32_u24 {t}, 3584, {t}
        v_and_b32 {t2}, 1, {self.vL}
        v_lshl_add_u32 {self.vW1c}, {t2}, 4, {t}""")
        self.sOff = S.alloc(3, 1)
        self.sW1r = S.alloc(3, 1)
        self.sV11, self.sV12 = S.alloc(), S.alloc()
        K(f"""s_mul_i32 {self.sT0}, {self.sT}, 224
        s_lshl_b32 {self.sT1}, {self.sQ}, 5
        s_add_u32 {self.sOff[0]}, {self.sT1}, {self.sT0}
        s_xor_b32 {self.sT1}, {self.sQ}, 2
        s_lshr_b32 {self.sT1}, {self.sT1}, 1
        s_and_b32 {self.sT2}, {self.sQ}, 1
        s_lshl2_add_u32 {self.sT1}, {self.sT1}, {self.sT2}
        s_lshl_b32 {self.sT1}, {self.sT1}, 5
        s_add_u32 {self.sOff[1]}, {self.sT1}, {self.sT0}
        s_xor_b32 {self.sT2}, {self.sT2}, 1
        s_mul_i32 {self.sT2}, {self.sT2}, 192
        s_add_u32 {self.sOff[2]}, {self.sT2}, {self.sT0}
        s_mul_i32 {self.sT0}, {self.sV}, {32*3584}
        s_add_u32 {self.sW1r[0]}, {self.sOff[0]}, {self.sT0}
        s_add_u32 {self.sW1r[1]}, {self.sOff[1]}, {self.sT0}
        s_add_u32 {self.sW1r[2]}, {self.sOff[2]}, {self.sT0}
        s_lshl_b32 {self.sV11}, {self.sV}, 11
        s_lshl_b32 {self.sV12}, {self.sV}, 12""")
        w1b = [("x_done", "w1b", self.dma(self.vW1b, self.sW1, (self.sW1r[1], (b * 128 + 16 * h) * 3584), (self.sV11, L_W1B + b * 8192 + h * 1024), tag="w1b"))
               for b in range(4) for h in range(2)]
        w1a = lambda bs, cond, tag: [(cond, tag, self.dma(self.vW1a[u], self.sW1, (self.sW1r[0], b * 128 * 3584), (self.sV12, L_W1A + b * 16384), imm=u * 1024, tag=tag))
                                     for b in bs for u in range(4)]
        w1c = [("q_done", "w1c", self.dma(self.vW1c, self.sW1, (self.sW1r[2], b * 128 * 3584), (self.sV10, L_W1C + b * 4096), tag="w1c")) for b in range(4)]
        first = w1b + wo if self.o("w1b_first", True) else wo + w1b
        for e in first + w1a((2, 3), "q_done", "w1ah") + w1c + w1a((0, 1), "c2_read", "w1al"):
            self.bg_add(*e)
        t.free(), t2.free()

    def setup_w2(self):
        K, V, S = self.K, self.V, self.S
        self.vW2 = V.alloc()
        t, t2 = V.alloc(), V.alloc()
        K(f"""v_lshrrev_b32 {t}, 4, {self.vL}
        v_xor_b32 {t2}, {t}, {self.vR}
        v_add_u32 {t2}, {self.sG}, {t2}
        v_and_b32 {t2}, 3, {t2}
        v_lshl_add_u32 {t2}, {t2}, 2, {self.vC}
        v_lshlrev_b32 {t}, 10, {t}
        v_lshl_add_u32 {self.vW2}, {t2}, 4, {t}
        s_lshl_b32 {self.sT0}, {self.sQ}, 8
        v_add_u32 {self.vW2}, {self.sT0}, {self.vW2}
        s_mul_i32 {self.sT3}, {self.sG}, 448
        s_lshl2_add_u32 {self.sT3}, {self.sV}, {self.sT3}""")
        t.free(), t2.free()
        self.sW2r = S.alloc(12, 1)
        self.sAct = S.alloc(4, 1)
        for i in range(4):
            K(f"""s_add_u32 {self.sT0}, {self.sQ}, {i}
            s_and_b32 {self.sT0}, {self.sT0}, 3
            s_lshl2_add_u32 {self.sT1}, {self.sG}, {self.sT0}
            s_lshl4_add_u32 {self.sT1}, {self.sV}, {self.sT1}
            s_mul_i32 {self.sT1}, {self.sT1}, 7168
            s_add_u32 {self.sT1}, {self.sT1}, {self.sRBB}
            s_add_u32 {self.sAct[i]}, {self.sT1}, {RB_ACT}
            s_mul_i32 {self.sT1}, {self.sT0}, 112
            s_add_u32 {self.sT1}, {self.sT1}, {self.sT3}
            s_lshl4_add_u32 {self.sT2}, {self.sT0}, {self.sT1}
            s_lshl_b32 {self.sW2r[3*i]}, {self.sT2}, 10
            s_xor_b32 {self.sT2}, {self.sT0}, 2
            s_lshr_b32 {self.sT2}, {self.sT2}, 1
            s_and_b32 {self.sT0}, {self.sT0}, 1
            s_lshl2_add_u32 {self.sT2}, {self.sT2}, {self.sT0}
            s_lshl4_add_u32 {self.sT2}, {self.sT2}, {self.sT1}
            s_lshl_b32 {self.sW2r[3*i+1]}, {self.sT2}, 10
            s_xor_b32 {self.sT0}, {self.sT0}, 1
            s_mul_i32 {self.sT0}, {self.sT0}, 96
            s_add_u32 {self.sT0}, {self.sT0}, {self.sT1}
            s_lshl_b32 {self.sW2r[3*i+2]}, {self.sT0}, 10""")
        for z, (i, ks) in enumerate(USE):
            base, add = (3 * i, ks) if ks < 4 else (3 * i + 1, ks - 4) if ks < 6 else (3 * i + 2, 0)
            tag = "w2o" if z < 7 else "w2a" if z < 19 else "w2b"
            self.bg_add("b_done" if z < 16 else "pass1", tag,
                        self.dma(self.vW2, self.sW2, (self.sW2r[base], add * 16384), (self.sV10, w2slot(z)), tag=tag))

    def phase_a(self):
        K, V, A, S = self.K, self.V, self.A, self.S
        X = self.X = A.alloc(128)
        t, t2, t3 = V.alloc(), V.alloc(), V.alloc()
        vXr, vRes, vWk, vWv = V.alloc(4), V.alloc(2), V.alloc(4), V.alloc(4)
        K(f"""v_bfe_u32 {t}, {self.vN}, 1, 3
        v_xor_b32 {t}, {t}, {self.vG}
        v_lshlrev_b32 {t2}, 7, {self.vN}
        v_lshl_add_u32 {t3}, {t}, 4, {t2}
        s_lshl_b32 {self.sT0}, {self.sV}, 5
        v_xor_b32 {t}, {self.sT0}, {t3}
        v_add_u32 {vXr[0]}, {self.sM0x}, {t}
        v_xor_b32 {vXr[1]}, 32, {vXr[0]}
        v_xor_b32 {vXr[2]}, 64, {vXr[0]}
        v_xor_b32 {vXr[3]}, 96, {vXr[0]}
        s_lshl_b32 {self.sT0}, {self.sR}, 14
        s_and_b32 {self.sT1}, {self.sIres}, 3
        s_lshl_b32 {self.sT1}, {self.sT1}, 12
        s_add_u32 {self.sT0}, {self.sT0}, {self.sT1}
        s_add_u32 {self.sT0}, {self.sT0}, {L_XS}
        s_lshl_b32 {self.sT1}, {self.sKH}, 6
        v_xor_b32 {t3}, {self.sT1}, {t3}
        v_add_u32 {vRes[0]}, {self.sT0}, {t3}
        v_xor_b32 {vRes[1]}, 32, {vRes[0]}
        v_lshl_add_u32 {t}, {self.vG}, 3, {self.vR}
        v_lshlrev_b32 {t}, 6, {t}
        v_add_u32 {t}, {self.sV10}, {t}
        v_lshl_add_u32 {t2}, {self.vH16}, 2, {self.vC}
        v_lshl_add_u32 {vWk[0]}, {t2}, 3, {t}
        v_and_b32 {t2}, 1, {self.vC}
        v_lshl_add_u32 {t2}, {t2}, 1, {self.vH16}
        v_lshrrev_b32 {t3}, 1, {self.vC}
        v_lshl_add_u32 {t2}, {t2}, 1, {t3}
        v_lshl_add_u32 {vWv[0]}, {t2}, 3, {t}""")
        for s in range(1, 4):
            K(f"v_xor_b32 {vWk[s]}, {1024*s}, {vWk[0]}\nv_xor_b32 {vWv[s]}, {1024*s}, {vWv[0]}")
        for g in self.chunk_groups(1):
            self.emit(g)
        self.stamp("issued")
        self.xres = V.alloc(8)
        self.sel16 = V.alloc(4)
        vNeg, vPh = V.alloc(), V.alloc()
        self.augA, self.augB, augV = V.alloc(4), V.alloc(4), V.alloc(4)
        Wb = [V.alloc(32), V.alloc(32)]
        accK, accV = V.alloc(16), V.alloc(16)
        csK, csV, stt = V.alloc(4), V.alloc(4), V.alloc(4)
        phiA = V.alloc(8)
        later = []
        with self.seg() as p:
            self.setup_misc()
            self.row_stats()
            K(f"""v_bfe_u32 {t}, {self.vL}, 2, 1
            v_cmp_eq_u32 vcc, {t}, {self.vH16}
            v_mov_b32 {t2}, 0x3f803f80
            v_lshlrev_b32 {vNeg}, 31, {t}
            v_cndmask_b32 {self.sel16[0]}, 0, {t2}, vcc
            v_cndmask_b32 {self.sel16[1]}, 0, {t2}, vcc
            v_cndmask_b32 {self.sel16[2]}, 0, {t2}, vcc
            v_cndmask_b32 {self.sel16[3]}, 0, {t2}, vcc
            v_lshrrev_b32 {t}, 16, {vNeg}
            v_or_b32 {vNeg}, {vNeg}, {t}""")
            self.chunk_offsets(3)
        later.append(p)
        with self.seg() as p:
            for i in range(4, 8):
                self.chunk_offsets(i)
            K(f"""v_lshl_add_u32 {t}, {self.vG}, 2, {self.vR}
            v_lshlrev_b32 {t}, 5, {t}
            v_lshrrev_b32 {t3}, 1, {self.vC}
            v_lshl_add_u32 {t2}, {self.vH16}, 1, {t3}
            v_lshl_add_u32 {vPh}, {t2}, 3, {t}
            s_add_u32 {self.sT2}, {self.sV10}, {L_WQ}
            v_add_u32 {vPh}, {self.sT2}, {vPh}""")
            for q in range(1, 4):
                K(f"v_mov_b32 {self.augA[q]}, 0\nv_mov_b32 {self.augB[q]}, 0\nv_mov_b32 {augV[q]}, 0")
        later.append(p)
        self.sRho.free(), self.sWb.free()
        with self.seg() as p:
            self.setup_streams()
        later.append(p)
        vPw, vKa, vKb, vP1w, vP1r, vCw, vCr, vSt = (V.alloc() for _ in range(8))
        sP1w, sP1r, sP2, sSt = S.alloc(), S.alloc(), S.alloc(), S.alloc()
        sC = [S.alloc(2) for _ in range(3)]
        with self.seg() as p:
            for q in range(3):
                K(f"s_mov_b32 {sC[q][0]}, {0x11111111 << (q+1) & 0xffffffff}\ns_mov_b32 {sC[q][1]}, {0x11111111 << (q+1) & 0xffffffff}")
            K(f"""v_lshl_add_u32 {t}, {self.vG}, 7, {self.vN}
            s_lshl_b32 {self.sT0}, {self.sV}, 5
            v_add_lshl_u32 {vPw}, {t}, {self.sT0}, 5
            v_lshrrev_b32 {t}, 2, {self.vL}
            v_lshlrev_b32 {t2}, 5, {t}
            v_lshl_add_u32 {t2}, {self.vC}, 3, {t2}
            v_add_u32 {vKa}, {self.sV12}, {t2}
            s_lshl_b32 {self.sT0}, {self.sKH}, 12
            v_add_u32 {vKb}, {self.sT0}, {t2}
            v_lshlrev_b32 {t2}, 4, {self.vC}
            v_lshl_add_u32 {vP1w}, {t}, 11, {t2}
            v_lshl_add_u32 {vP1r}, {t}, 7, {t2}
            v_lshlrev_b32 {vCr}, 4, {self.vN}
            s_lshl_b32 {self.sT0}, {self.sV}, 2
            v_add_u32 {vCw}, {self.sT0}, {vCr}
            s_lshl_b32 {self.sT0}, {self.sV}, 9
            v_add_u32 {vSt}, {self.sT0}, {vCr}
            s_add_u32 {sSt}, {self.sRBB}, {RB_ST1}
            s_lshl2_add_u32 {self.sT0}, {self.sT}, {self.sV}
            s_lshl_b32 {sP2}, {self.sT0}, 10
            s_add_u32 {sP2}, {sP2}, {WS_P2}
            s_lshl_b32 {self.sT0}, {self.sT0}, 15
            s_add_u32 {self.sT0}, {self.sT0}, {WS_P1}
            s_lshl_b32 {self.sT1}, {self.sRB}, 7
            s_add_u32 {sP1w}, {self.sT0}, {self.sT1}
            s_lshl_b32 {self.sT1}, {self.sRB}, 11
            s_add_u32 {sP1r}, {self.sT0}, {self.sT1}""")
        later.append(p)

        ldst = f"buffer_load_dwordx4 {stt}, {vSt}, {self.sWS}, {sSt} offen sc1"

        def reads(i):
            gs = []
            for s in range(4):
                ks = 4 * i + s
                with self.seg() as g:
                    K(f"ds_read_b128 {X[4*ks:4*ks+4]}, {vXr[s]} offset:{(i%4)*4096}", f"rd{i}")
                    self.trread(Wb[i & 1][8 * s:8 * s + 4], vWk[s], L_WK + i * 4096, L_WK + i * 4096 + 256, tag=f"rd{i}")
                gs.append(g)
                with self.seg() as g:
                    self.trread(Wb[i & 1][8 * s + 4:8 * s + 8], vWv[s], L_WV + i * 4096, L_WV + i * 4096 + 256, tag=f"rd{i}")
                gs.append(g)
            return gs

        def mf(i, s, what):
            ks = 4 * i + s
            xf, wk, wv = X[4 * ks:4 * ks + 4], Wb[i & 1][8 * s:8 * s + 4], Wb[i & 1][8 * s + 4:8 * s + 8]
            c0 = lambda r: "0" if ks == 0 else str(r)
            return {"K": f"{MF32} {accK}, {wk}, {xf}, {c0(accK)}", "V": f"{MF32} {accV}, {wv}, {xf}, {c0(accV)}",
                    "ck": f"{MF16} {csK}, {self.sel16}, {wk}, {c0(csK)}", "cv": f"{MF16} {csV}, {self.sel16}, {wv}, {c0(csV)}"}[what]

        self.emit(later.pop(0))
        for i in range(8):
            self.P.waitvm(f"c{i}")
            K("s_barrier")
            if i == 0:
                self.stamp("chunk0")
            Ls = self.label("res")
            K(f"s_cmp_lg_u32 {self.sIres}, {i}\ns_cbranch_scc1 {Ls}")
            K(f"""ds_read_b128 {self.xres[0:4]}, {vRes[0]}
            ds_read_b128 {self.xres[4:8]}, {vRes[1]}
            s_waitcnt lgkmcnt(0)""", "cond")
            K(f"{Ls}:")
            rd = reads(i)
            dm = self.chunk_groups(i + 2) if i + 2 < 8 else []
            if i == 0:
                for g in rd + dm:
                    self.emit(g)
            else:
                if i == 3:
                    self.P.waitvm("phi")
                    for a in range(2):
                        self.trread(phiA[4 * a:4 * a + 4], vPh, a * 512, a * 512 + 256)
                if i == 4:
                    for q in range(8):
                        K(f"v_xor_b32 {phiA[q]}, {phiA[q]}, {vNeg}")
                    self.ok.add("phi_read")
                with self.seg() as m:
                    for s in range(4):
                        for w in ("K", "V") + (("ck", "cv") if s == 0 else ()):
                            K(mf(i - 1, s, w))
                m = self.weave(m, rd)
                if dm:
                    m = self.weave(m, dm)
                else:
                    if i == 6:
                        m = self.weave(m, [Prog()(ldst)])
                    m = self.weave(m, None, every=self.o("wq_every", 2), start=1)
                self.emit(m)
            if later:
                self.emit(later.pop(0))
        assert not later
        self.stamp("kv7")
        vC2, vRstd2 = V.alloc(2), V.alloc(2)
        K(f"""{mf(7, 0, 'ck')}
        {mf(7, 0, 'cv')}
        {mf(7, 0, 'K')}""")
        self.tag_check(ldst, [stt[3]])
        self.ln_scalars(stt[0], stt[1], vRstd2[0], None, t, t2)
        K(f"""{mf(7, 1, 'K')}
        ds_write_b32 {vCw}, {csK[0]} offset:{L_CSX}
        ds_write_b32 {vCw}, {csV[0]} offset:{L_CSX + 512}
        v_mul_f32 {vC2[0]}, {LOG2E}, {vRstd2[0]}
        {mf(7, 2, 'K')}
        s_waitcnt lgkmcnt(0)
        s_barrier
        ds_read_b128 {csK}, {vCr} offset:{L_CSX}
        ds_read_b128 {csV}, {vCr} offset:{L_CSX + 512}
        {mf(7, 3, 'K')}""")
        self.ok.add("x_done")
        self.stamp("kvin")
        for r in (vNeg, vPh, self.junk, self.vXa, vXr, vRes, vWv, Wb[0], self.sChX, self.sX, self.sIres, vSt, sSt):
            r.free()
        kb, vb = V.alloc(8), V.alloc(8)
        P0 = V.alloc(16)
        sum4 = lambda c: f"v_add_f32 {c[0]}, {c[0]}, {c[1]}\nv_add_f32 {c[2]}, {c[2]}, {c[3]}\nv_add_f32 {c[0]}, {c[0]}, {c[2]}"
        with self.seg() as e:
            K(mf(7, 0, "V"))
            K(sum4(csK))
            self.hilo_pair(self.augA[0], csK[0], t2)
            K(mf(7, 1, "V"))
            K(f"{MF32} {accK}, {self.augA}, {self.augB}, {accK}")
            K(sum4(csV))
            self.hilo_pair(augV[0], csV[0], t2)
            K(mf(7, 2, "V"))
            K(mf(7, 3, "V"))
            for r in range(8):
                K(f"v_cvt_pk_bf16_f32 {kb[r]}, {accK[2*r]}, {accK[2*r+1]}")
            P1 = accK
            K(f"""{MF32} {accV}, {augV}, {self.augB}, {accV}
            {MF32} {P0}, {phiA[0:4]}, {kb[0:4]}, 0
            {MF32} {P1}, {phiA[4:8]}, {kb[4:8]}, 0""")
            for s in range(4):
                K(f"v_add_u32 {vWk[s]}, {L_WQ}, {vWk[s]}")
            for r in range(16):
                K(f"v_mul_f32 {accV[r]}, {accV[r]}, {vRstd2[0]}")
            for r in range(8):
                K(f"v_cvt_pk_bf16_f32 {vb[r]}, {accV[2*r]}, {accV[2*r+1]}")
            K(f"""ds_write_b128 {vPw}, {vb[0:4]} offset:{L_VT}
            ds_write_b128 {vPw}, {vb[4:8]} offset:{L_VT + 16}""")
            tt = V.alloc(8)
            phi = accV
            self.softmax2([P0, P1], [phi[0:8], phi[8:16]], vC2, tt)
            for a in range(2):
                K(f"""ds_write_b128 {vPw}, {phi[8*a:8*a+4]} offset:{L_PHI + a*8192}
                ds_write_b128 {vPw}, {phi[8*a+4:8*a+8]} offset:{L_PHI + a*8192 + 16}""")
            ones, g = vb[0:4], tt
            for q in range(4):
                K(f"v_mov_b32 {ones[q]}, 0x3f803f80")
            K(f"v_mov_b32 {g[3]}, {self.sTag}\nv_mov_b32 {g[7]}, {self.sTag}\nv_mov_b32 {g[6]}, 0")
        self.emit(self.sprinkle(e, self.o("gap_epi", 30), first=4))
        self.bg_flush("wq")
        self.P.waitvm("wq")
        K("s_waitcnt lgkmcnt(0)\ns_barrier")
        self.stamp("ksoft")
        W = Wb[1]
        z4, kv4 = csV, stt
        for ks in range(4):
            self.trread(W[8 * ks:8 * ks + 4], vKa, L_PHI + ks * 1024, L_PHI + ks * 1024 + 512)
            self.trread(W[8 * ks + 4:8 * ks + 8], vKb, L_VT + ks * 1024, L_VT + ks * 1024 + 512)
        for ks in range(4):
            c0 = lambda r: "0" if ks == 0 else str(r)
            K(f"""{MF16} {z4}, {W[8*ks:8*ks+4]}, {ones}, {c0(z4)}
            {MF16} {kv4}, {W[8*ks:8*ks+4]}, {W[8*ks+4:8*ks+8]}, {c0(kv4)}""")
        accQ = P0
        bufs = [W[4 * b:4 * b + 4] for b in range(8)]
        pre = 4
        qrd = lambda ks: self.trread(bufs[ks % 8], vWk[ks % 4], (ks // 4) * 4096, (ks // 4) * 4096 + 256)
        for ks in range(pre):
            qrd(ks)
        K(f"""v_cndmask_b32 {g[5]}, {z4[0]}, {z4[1]}, {sC[0]}
        v_cndmask_b32 {g[5]}, {g[5]}, {z4[2]}, {sC[1]}
        v_cndmask_b32 {g[5]}, {g[5]}, {z4[3]}, {sC[2]}
        v_mov_b32 {g[0]}, {kv4[0]}
        v_mov_b32 {g[1]}, {kv4[1]}
        v_mov_b32 {g[2]}, {kv4[2]}
        v_mov_b32 {g[4]}, {kv4[3]}
        buffer_store_dwordx4 {g[0:4]}, {vP1w}, {self.sWS}, {sP1w} offen sc1
        buffer_store_dwordx4 {g[4:8]}, {vP1w}, {self.sWS}, {sP1w} offen offset:64 sc1""")
        self.stamp("pub1")
        for r in (vKa, vKb, vP1w, sP1w, vPw, augV) + tuple(sC):
            r.free()
        ld1 = f"""buffer_load_dwordx4 {g[0:4]}, {vP1r}, {self.sWS}, {sP1r} offen sc1
        buffer_load_dwordx4 {g[4:8]}, {vP1r}, {self.sWS}, {sP1r} offen offset:64 sc1"""
        for ks in range(32):
            if ks + pre < 32:
                qrd(ks + pre)
            c0 = lambda r: "0" if ks == 0 else str(r)
            if ks % 4 == 0:
                K(f"{MF16} {csK}, {self.sel16}, {bufs[ks%8]}, {c0(csK)}")
            K(f"{MF32} {accQ}, {bufs[ks%8]}, {X[4*ks:4*ks+4]}, {c0(accQ)}")
            if ks < self.o("q_bg_until", 22) and ks % self.o("q_bg_every", 2) == 1:
                self.bg(1)
            if ks == self.o("h1_at", 22):
                K(ld1)
            if ks == 30:
                K(f"ds_write_b32 {vCw}, {csK[0]} offset:{L_CSQ}")
        vWk.free()
        self.X.free()
        K("s_waitcnt lgkmcnt(0)\ns_barrier")
        self.ok.add("q_done")
        K(f"ds_read_b128 {csK}, {vCr} offset:{L_CSQ}")
        self.stamp("qgemm")
        self.tag_check(ld1, [g[3], g[7]])
        self.stamp("hop1")
        vals = [g[0], g[1], g[2], g[4], g[5]]
        tmp5 = [stt[0], stt[1], stt[2], stt[3], t]
        for ror in (4, 8):
            for x in vals:
                K(f"v_add_f32_dpp {x}, {x}, {x} row_ror:{ror} row_mask:0xf bank_mask:0xf")
        for sw in ("v_permlane16_swap_b32", "v_permlane32_swap_b32"):
            for x, y in zip(vals, tmp5):
                K(f"v_mov_b32 {y}, {x}")
            for x, y in zip(vals, tmp5):
                K(f"{sw} {x}, {y}")
            for x, y in zip(vals, tmp5):
                K(f"v_add_f32 {x}, {x}, {y}")
        K(f"""v_cvt_pk_bf16_f32 {g[0]}, {g[0]}, {g[1]}
        v_cvt_pk_bf16_f32 {g[1]}, {g[2]}, {g[4]}
        v_cvt_pk_bf16_f32 {g[2]}, {g[5]}, {g[5]}
        s_lshl_b32 {self.sT0}, {self.sRB}, 6
        s_add_u32 {self.sT0}, {self.sT0}, {sP2}
        s_mov_b64 exec, 15
        buffer_store_dwordx4 {g[0:4]}, {self.vL16}, {self.sWS}, {self.sT0} offen sc1
        s_mov_b64 exec, -1""")
        self.stamp("pub2")
        for r in (vP1r, sP1r, vCw, vCr):
            r.free()
        g2 = stt
        ld2 = f"buffer_load_dwordx4 {g2}, {self.vL16}, {self.sWS}, {sP2} offen sc1"
        self.sF2, sO = S.alloc(), S.alloc()
        with self.seg() as e:
            K(sum4(csK))
            self.hilo_pair(self.augA[0], csK[0], t2)
            K(f"{MF32} {accQ}, {self.augA}, {self.augB}, {accQ}")
            K(f"""v_and_b32 {t}, 15, {self.vL}
            v_lshrrev_b32 {t2}, 4, {self.vL}
            v_lshlrev_b32 {t2}, 3, {t2}
            v_lshl_add_u32 {t}, {t}, 5, {t2}
            s_mul_i32 {self.sT0}, {self.sV}, {17*32}
            v_add_u32 {t}, {self.sT0}, {t}
            v_lshl_add_u32 {t2}, {self.vC}, 1, {t2}
            v_add_u32 {t2}, {self.sT0}, {t2}
            v_min_u32 {t3}, 16, {self.vN}
            v_mad_u32_u24 {t3}, {self.vG}, 17, {t3}
            v_lshlrev_b32 {t3}, 5, {t3}""")
            for r in range(8):
                K(f"v_cvt_pk_bf16_f32 {kb[r]}, {accQ[2*r]}, {accQ[2*r+1]}")
            K(f"""{MF32} {P0}, {phiA[0:4]}, {kb[0:4]}, 0
            {MF32} {P1}, {phiA[4:8]}, {kb[4:8]}, 0
            s_lshl4_add_u32 {self.sT0}, {self.sV}, {self.sT}
            s_lshl_b32 {sO}, {self.sT0}, 11
            s_add_u32 {sO}, {sO}, {self.sRBB}
            s_lshl_b32 {self.sT0}, {self.sV}, 7
            s_lshl2_add_u32 {self.sF2}, {self.sT}, {self.sT0}
            s_add_u32 {self.sF2}, {self.sF2}, {self.sFl}""")
            self.softmax2([P0, P1], [phi[0:8], phi[8:16]], vC2, tt)
        e = self.sprinkle(e, self.o("gap_q", 20), first=0)
        cut = len(e) - self.o("h2_before", 40)
        self.emit(e[:cut])
        K(ld2)
        self.emit(e[cut:])
        self.stamp("qsoft")
        self.tag_check(ld2, [g2[3]])
        self.stamp("hop2")
        sP2.free()
        K(f"""ds_write_b64 {t}, {g2[0:2]} offset:{L_KVA}
        ds_write_b16 {t2}, {g2[2]} offset:{L_KVA + 512}""")
        self.bg_flush("wo")
        self.bg_flush("w1b")
        self.P.waitvm("wo")
        self.P.waitvm("w1b")
        K("s_waitcnt lgkmcnt(0)\ns_barrier")
        for a in range(2):
            for s in range(2):
                K(f"ds_read_b128 {W[8*a+4*s:8*a+4*s+4]}, {t3} offset:{L_KVA + a*2*17*32 + s*16}")
        for a, Pa in enumerate((P0, P1)):
            K(f"""{MF32} {Pa}, {W[8*a:8*a+4]}, {phi[8*a:8*a+4]}, 0
            {MF32} {Pa}, {W[8*a+4:8*a+8]}, {phi[8*a+4:8*a+8]}, {Pa}""")
        for a, Pa in enumerate((P0, P1)):
            K(f"""v_add_f32 {Pa[8]}, 0x358637bd, {Pa[8]}
            v_rcp_f32 {Pa[8]}, {Pa[8]}""")
            for r in range(0, 8, 2):
                K(f"v_pk_mul_f32 {Pa[r:r+2]}, {Pa[r:r+2]}, {Pa[8:10]} op_sel_hi:[1,0]")
            for r in range(4):
                K(f"v_cvt_pk_bf16_f32 {kb[4*a+r]}, {Pa[2*r]}, {Pa[2*r+1]}")
            K(f"buffer_store_dwordx4 {kb[4*a:4*a+4]}, {self.vL16}, {self.sWS}, {sO} offen offset:{RB_O + a*1024} sc1", "ost")
        self.stamp("ost")
        for r in (W, accK, accV, csK, csV, stt, phiA, kb, vb, P0, tt, vC2, vRstd2, self.vWa, t, t2, t3, sO, self.sChW, self.vWo, self.sWo,
                  self.sW, self.sWO, self.vW1b, self.augA):
            r.free()

    def cs_setup(self):
        K, V = self.K, self.V
        self.vr1 = V.alloc(4)
        vr = self.vr1
        t, t2, t3 = V.alloc(), V.alloc(), V.alloc()
        self.pair_read_addr(vr[0], 0, L_W1A)
        K(f"""v_xor_b32 {vr[1]}, 64, {vr[0]}
        v_lshl_add_u32 {t}, {self.vG}, 2, {self.vR}
        v_lshl_add_u32 {t2}, {self.vH16}, 2, {self.vC}
        v_lshlrev_b32 {t3}, 6, {t}
        v_lshl_add_u32 {vr[2]}, {t2}, 3, {t3}
        v_add_u32 {vr[2]}, {L_W1B}, {vr[2]}
        v_lshlrev_b32 {t3}, 5, {t}
        v_lshl_add_u32 {vr[3]}, {self.vC}, 3, {t3}""")
        assert L_W1C == 0
        self.vcs = V.alloc(4)
        K(f"""v_add_u32 {self.vcs[0]}, {self.sV12}, {vr[0]}
        v_add_u32 {self.vcs[1]}, {self.sV12}, {vr[1]}
        v_add_u32 {self.vcs[2]}, {self.sV11}, {vr[2]}
        v_add_u32 {self.vcs[3]}, {self.sV10}, {vr[3]}""")
        self.cs = [V.alloc(4) for _ in range(4)]
        self.csb = V.alloc(32)
        self.cs_started = set()
        t.free(), t2.free(), t3.free()

    def cs_piece(self, tag, items):
        kst = (2048, 2048, 1024, 512)
        self.bg_flush(tag)
        self.P.waitvm(tag)
        fr = [(c, (8 * b + h) * kst[c]) for h in range(2) for c, b in items]
        for j, (c, o) in enumerate(fr):
            self.trread(self.csb[4 * j:4 * j + 4], self.vcs[c], o, o + kst[c] // 2)
        for j, (c, o) in enumerate(fr):
            self.K(f"{MF16} {self.cs[c]}, {self.sel16}, {self.csb[4*j:4*j+4]}, {self.cs[c] if c in self.cs_started else 0}")
            self.cs_started.add(c)

    def phase_b(self):
        K, V, A, S = self.K, self.V, self.A, self.S
        vA, va, vb, vk, vs = (V.alloc() for _ in range(5))
        sO, sH, sSt = S.alloc(), S.alloc(), S.alloc()
        self.sF3 = S.alloc()
        O = A.alloc(128)
        self.C2 = A.alloc(128)
        self.cs_setup()
        n1 = self.o("c2_before", 24)
        for ks in range(n1):
            self.trread(self.C2[4 * ks:4 * ks + 4], self.vr1[2], ks * 1024, ks * 1024 + 512)
        self.P.waitvm("ost")
        self.set_flag(self.sF2, FL_E2)
        self.stamp("oflag")
        for ks in range(n1, 32):
            self.trread(self.C2[4 * ks:4 * ks + 4], self.vr1[2], ks * 1024, ks * 1024 + 512)
        self.cs_piece("w1b", [(2, b) for b in range(4)])
        K(f"""v_and_b32 {vA}, 7, {self.vL}
        s_lshl_b32 {self.sT0}, {self.sR}, 5
        s_lshl3_add_u32 {self.sT0}, {self.sKH}, {self.sT0}
        v_add_lshl_u32 {vA}, {vA}, {self.sT0}, 2
        s_lshl1_add_u32 {self.sT0}, {self.sR}, {self.sKH}
        s_lshl_b32 {sO}, {self.sT0}, 14
        s_add_u32 {sO}, {sO}, {self.sRBB}""")
        self.poll_issue(vA, FL_E2, "pl")
        K("s_waitcnt lgkmcnt(0)\ns_barrier")
        self.ok.add("c2_read")
        self.poll_check(vA, FL_E2, [(self.sF2, FL_E2)])
        self.stamp("e2")
        for ks in range(16):
            if ks and ks % 4 == 0:
                K(f"s_add_u32 {sO}, {sO}, 4096")
            K(f"buffer_load_dwordx4 {O[4*ks:4*ks+4]}, {self.vL16}, {self.sWS}, {sO} offen offset:{RB_O + (ks%4)*1024} sc1")
        self.set_flag(self.sF2, FL_E2, safe=True)
        keep, send = V.alloc(16), V.alloc(16)
        sel = V.alloc(8)
        self.selector(sel, True)
        K(f"""s_lshl_b32 {self.sT0}, {self.sKH}, 15
        s_add_u32 {self.sT0}, {self.sT0}, {L_XS}""")
        self.pair_read_addr(vk, self.sKH, self.sT0)
        K(f"""v_xor_b32 {vs}, 64, {vk}
        {MF32} {keep}, {sel[0:4]}, {self.xres[0:4]}, 0
        {MF32} {keep}, {sel[4:8]}, {self.xres[4:8]}, {keep}
        v_add_u32 {va}, {self.sV12}, {self.vL16}
        v_xor_b32 {vb}, 0x2000, {va}
        s_and_b32 {self.sT1}, {self.sT}, 7
        s_lshl1_add_u32 {self.sT2}, {self.sT1}, {self.sKH}
        s_lshl4_add_u32 {self.sT0}, {self.sR}, {self.sT2}
        s_lshl_b32 {sH}, {self.sT0}, 11
        s_add_u32 {sH}, {sH}, {self.sRBB}
        s_add_u32 {sH}, {sH}, {RB_H}
        s_lshl_b32 {self.sT0}, {self.sR}, 7
        s_lshl2_add_u32 {self.sF3}, {self.sT2}, {self.sT0}
        s_add_u32 {self.sF3}, {self.sF3}, {self.sFl}
        s_lshl3_add_u32 {sSt}, {self.sR}, {self.sT1}
        s_lshl_b32 {sSt}, {sSt}, 9
        s_lshl3_add_u32 {sSt}, {self.sKH}, {sSt}
        s_add_u32 {sSt}, {sSt}, {self.sRBB}
        s_add_u32 {sSt}, {sSt}, {RB_ST2}""")
        Wb = self.csb
        nb, pre = 8, 6
        with self.seg() as m:
            rd = lambda i: self.trread(Wb[4 * (i % nb):4 * (i % nb) + 4], vk if i % 2 else vs, (i // 2) * 2048, (i // 2) * 2048 + 1024)
            for i in range(pre):
                rd(i)
            for i in range(32):
                if i + pre < 32:
                    rd(i + pre)
                acc = keep if i % 2 else send
                K(f"{MF32} {acc}, {Wb[4*(i%nb):4*(i%nb)+4]}, {O[4*(i//2):4*(i//2)+4]}, {'0' if i == 0 else acc}")
        self.emit(self.weave(m, None, every=self.o("b_every", 2), start=self.o("b_start", 6)))
        self.stamp("bgemm")
        for q in range(4):
            K(f"ds_write_b128 {va}, {send[4*q:4*q+4]} offset:{L_RED + q*1024}")
        K(f"v_lshlrev_b32 {va}, 4, {self.vN}")
        K("s_waitcnt lgkmcnt(0)\ns_barrier")
        self.ok.add("b_done")
        for q in range(4):
            K(f"ds_read_b128 {send[4*q:4*q+4]}, {vb} offset:{L_RED + q*1024}")
        hb = sel
        for h in range(2):
            for r in range(8 * h, 8 * h + 8, 2):
                K(f"v_pk_add_f32 {keep[r:r+2]}, {keep[r:r+2]}, {send[r:r+2]}")
            for r in range(4 * h, 4 * h + 4):
                K(f"v_cvt_pk_bf16_f32 {hb[r]}, {keep[2*r]}, {keep[2*r+1]}")
            K(f"buffer_store_dwordx4 {hb[4*h:4*h+4]}, {self.vL16}, {self.sWS}, {sH} offen offset:{1024*h} sc1")
        st = send
        K(f"""v_pk_add_f32 {st[0:2]}, {keep[0:2]}, {keep[2:4]}
        v_pk_mul_f32 {st[2:4]}, {keep[0:2]}, {keep[0:2]}
        v_pk_add_f32 {st[4:6]}, {keep[4:6]}, {keep[6:8]}
        v_pk_mul_f32 {st[6:8]}, {keep[2:4]}, {keep[2:4]}""")
        for n, r in enumerate(range(4, 16, 2)):
            if r >= 8:
                a = st[0:2] if n % 2 == 0 else st[4:6]
                K(f"v_pk_add_f32 {a}, {a}, {keep[r:r+2]}")
            a = st[2:4] if n % 2 == 0 else st[6:8]
            K(f"v_pk_fma_f32 {a}, {keep[r:r+2]}, {keep[r:r+2]}, {a}")
        K(f"""v_pk_add_f32 {st[0:2]}, {st[0:2]}, {st[4:6]}
        v_pk_add_f32 {st[2:4]}, {st[2:4]}, {st[6:8]}
        v_add_f32 {st[0]}, {st[0]}, {st[1]}
        v_add_f32 {st[1]}, {st[2]}, {st[3]}""")
        self.half_add2(st[0], st[1], st[2], st[3])
        K(f"buffer_store_dwordx2 {st[0:2]}, {va}, {self.sWS}, {sSt} offen sc1", "hst")
        self.stamp("hst")
        self.vRedR = vb
        for r in (keep, send, sel, vA, va, vk, vs, self.xres, O, sO, sH, sSt, self.sF2):
            r.free()

    def phase_cd(self):
        K, V, A, S = self.K, self.V, self.A, self.S
        self.cs_piece("w1ah", [(0, 2), (1, 2), (0, 3), (1, 3)])
        self.cs_piece("w1c", [(3, b) for b in range(4)])
        self.P.waitvm("hst")
        self.set_flag(self.sF3, FL_E3)
        self.stamp("hflag")
        t, t2, t3 = V.alloc(), V.alloc(), V.alloc()
        augA = [V.alloc(4) for _ in range(4)]
        vA, vS = V.alloc(), V.alloc()
        sH, sSt, sHr = S.alloc(), S.alloc(), S.alloc()
        K(f"""v_and_b32 {vA}, 15, {self.vL}
        s_lshl_b32 {self.sT0}, {self.sV}, 5
        v_add_lshl_u32 {vA}, {vA}, {self.sT0}, 2
        s_lshl_b32 {sH}, {self.sV}, 15
        s_add_u32 {sH}, {sH}, {self.sRBB}
        s_add_u32 {sH}, {sH}, {RB_H}
        s_add_u32 {sSt}, {self.sV12}, {self.sRBB}
        s_add_u32 {sSt}, {sSt}, {RB_ST2}
        v_lshlrev_b32 {vS}, 11, {self.vG}
        v_lshl_add_u32 {vS}, {self.vN}, 4, {vS}
        s_lshl2_add_u32 {self.sT1}, {self.sQ}, {self.sG}
        s_lshl_b32 {sHr}, {self.sT1}, 11
        s_add_u32 {sHr}, {sHr}, {sH}""")
        self.cs_piece("w1al", [(0, 0), (1, 0), (0, 1), (1, 1)])
        self.poll_issue(vA, FL_E3, "pl")
        cw = self.csb[0:4]
        for c in range(4):
            K(f"v_mov_b32 {cw[c]}, {self.cs[c][0]}")
        K(f"""ds_write_b128 {self.vRedR}, {cw} offset:{L_RED}
        s_waitcnt lgkmcnt(0)
        s_barrier""")
        self.poll_check(vA, FL_E3, [(self.sF3, FL_E3)])
        self.stamp("e3")
        st = V.alloc(16)
        H = A.alloc(128)
        hres = V.alloc(8)
        hl = []
        for ks in range(32):
            with self.seg() as g:
                if ks and ks % 4 == 0:
                    K(f"s_add_u32 {sH}, {sH}, 4096")
                K(f"buffer_load_dwordx4 {H[4*ks:4*ks+4]}, {self.vL16}, {self.sWS}, {sH} offen offset:{(ks%4)*1024} sc1")
            hl.append(g)
        for i in range(4):
            hl.append(Prog()(f"buffer_load_dwordx4 {st[4*i:4*i+4]}, {vS}, {self.sWS}, {sSt} offen offset:{i*512} sc1"))
        with self.seg() as g:
            K(f"""v_lshlrev_b32 {t}, 1, {self.vN}
            v_and_b32 {t2}, 31, {t}
            buffer_load_ushort {augA[0][1]}, {t}, {self.sB1}, {self.sOff[0]} offen
            buffer_load_ushort {augA[1][1]}, {t}, {self.sB1}, {self.sOff[0]} offen offset:64
            buffer_load_ushort {augA[2][1]}, {t}, {self.sB1}, {self.sOff[1]} offen
            buffer_load_ushort {augA[3][1]}, {t2}, {self.sB1}, {self.sOff[2]} offen""")
        hl.append(g)
        hl.append(Prog()(f"buffer_load_dwordx4 {hres[0:4]}, {self.vL16}, {self.sWS}, {sHr} offen sc1"))
        hl.append(Prog()(f"buffer_load_dwordx4 {hres[4:8]}, {self.vL16}, {self.sWS}, {sHr} offen offset:1024 sc1"))
        with self.seg() as g:
            self.set_flag(self.sF3, FL_E3, safe=True)
        hl.append(g)
        npre = self.o("h_pre", 10)
        for g in hl[:npre]:
            self.emit(g)
        hl = hl[npre:]
        for w in range(4):
            K(f"ds_read_b128 {self.cs[w]}, {self.vL16} offset:{L_RED + w*4096}")
        self.setup_w2()
        K(f"""v_pk_add_f32 {self.cs[0][0:2]}, {self.cs[0][0:2]}, {self.cs[1][0:2]}
        v_pk_add_f32 {self.cs[0][2:4]}, {self.cs[0][2:4]}, {self.cs[1][2:4]}
        v_pk_add_f32 {self.cs[2][0:2]}, {self.cs[2][0:2]}, {self.cs[3][0:2]}
        v_pk_add_f32 {self.cs[2][2:4]}, {self.cs[2][2:4]}, {self.cs[3][2:4]}
        v_pk_add_f32 {self.cs[0][0:2]}, {self.cs[0][0:2]}, {self.cs[2][0:2]}
        v_pk_add_f32 {self.cs[0][2:4]}, {self.cs[0][2:4]}, {self.cs[2][2:4]}""")
        for c in range(4):
            self.hilo_pair(augA[c][0], self.cs[0][c], t3)
            K(f"v_mov_b32 {augA[c][2]}, 0\nv_mov_b32 {augA[c][3]}, 0")
        self.stamp("cpre")
        for r in self.cs + [self.vW1a, self.vW1c, self.vcs, self.sW1r, self.sV11, self.vRedR, self.sel16]:
            r.free()
        vr = self.vr1
        kst = (2048, 2048, 1024, 512)
        Wb = self.csb
        accs = [V.alloc(16) for _ in range(4)]
        nb, pre = 8, 4

        def gemm1(tiles):
            seq = [(ks, c) for ks in range(32) for c in tiles]
            rd = lambda i: self.trread(Wb[4 * (i % nb):4 * (i % nb) + 4], vr[seq[i][1]], seq[i][0] * kst[seq[i][1]],
                                       seq[i][0] * kst[seq[i][1]] + kst[seq[i][1]] // 2)
            with self.seg() as m:
                for i in range(pre):
                    rd(i)
                for i, (ks, c) in enumerate(seq):
                    if i + pre < len(seq):
                        rd(i + pre)
                    K(f"{MF32} {accs[c]}, {Wb[4*(i%nb):4*(i%nb)+4]}, {H[4*ks:4*ks+4]}, {accs[c] if ks else 0}")
            return m

        vRs2, vC2, vM2, vSd = V.alloc(2), V.alloc(2), V.alloc(2), V.alloc()
        self.sF4 = S.alloc()
        m = self.weave(gemm1([0, 1]), hl, every=self.o("h_every", 2), start=0)
        self.emit(m)
        for g in hl:
            self.emit(g)
        self.bg(self.o("w2_p1", 2))
        self.stamp("c01")
        K("s_barrier")
        self.ok.add("pass1")
        act = V.alloc(28)
        tm = V.alloc(16)

        def mish(c, h, packed):
            x = accs[c][8 * h:8 * h + 8]
            e, d = tm[0:8], tm[8:16]
            pr = range(0, 8, 2)
            if packed:
                steps = [[f"v_pk_mul_f32 {e[r:r+2]}, {x[r:r+2]}, {vC2} op_sel_hi:[1,0]" for r in pr],
                         [f"v_exp_f32 {e[r]}, {e[r]}" for r in range(8)],
                         [f"v_pk_add_f32 {d[r:r+2]}, {e[r:r+2]}, 2.0 op_sel_hi:[1,0]" for r in pr],
                         [f"v_pk_fma_f32 {d[r:r+2]}, {d[r:r+2]}, {e[r:r+2]}, 2.0 op_sel_hi:[1,1,0]" for r in pr],
                         [f"v_rcp_f32 {d[r]}, {d[r]}" for r in range(8)],
                         [f"v_pk_fma_f32 {d[r:r+2]}, {d[r:r+2]}, {vM2}, {vRs2} op_sel_hi:[1,0,0]" for r in pr],
                         [f"v_pk_mul_f32 {d[r:r+2]}, {d[r:r+2]}, {x[r:r+2]}" for r in pr]]
                for s_ in steps:
                    K("\n".join(s_))
            else:
                ops = lambda r: [f"v_mul_f32 {e[r]}, {x[r]}, {vC2[0]}", f"v_exp_f32 {e[r]}, {e[r]}", f"v_add_f32 {d[r]}, 2.0, {e[r]}",
                                 f"v_fma_f32 {d[r]}, {d[r]}, {e[r]}, 2.0", f"v_rcp_f32 {d[r]}, {d[r]}",
                                 f"v_fma_f32 {d[r]}, {d[r]}, {vM2[0]}, {vRs2[0]}", f"v_mul_f32 {d[r]}, {d[r]}, {x[r]}"]
                for step in range(8 + 6):
                    for j in range(7):
                        r = step - j
                        if 0 <= r < 8:
                            K(ops(r)[j])
            f = 2 * c + h
            for r in range(4):
                K(f"v_cvt_pk_bf16_f32 {act[4*f+r]}, {d[2*r]}, {d[2*r+1]}")
            if f == 4:
                K(f"s_add_u32 {self.sAct[0]}, {self.sAct[0]}, 4096")
            K(f"buffer_store_dwordx4 {act[4*f:4*f+4]}, {self.vL16}, {self.sWS}, {self.sAct[0]} offen offset:{(f%4)*1024} sc1",
              "asta" if c < 2 else "astb")

        with self.seg() as f1:
            for i in range(2, 16, 2):
                K(f"v_add_f32 {st[0]}, {st[0]}, {st[i]}\nv_add_f32 {st[1]}, {st[1]}, {st[i+1]}")
            self.half_add2(st[0], st[1], st[2], st[3])
            for c in range(4):
                K(f"v_lshl_or_b32 {augA[c][1]}, {augA[c][1]}, 16, {augA[c][1]}")
            self.ln_scalars(st[0], st[1], vRs2[0], vSd, t, t2)
            K(f"""v_cvt_pk_bf16_f32 {t}, {vSd}, {vSd}
            v_and_b32 {t}, 0xffff0000, {t}
            v_sub_f32 {t2}, {vSd}, {t}
            v_cvt_pk_bf16_f32 {t}, {vSd}, {t2}
            v_and_b32 {t3}, 0xffff0000, {t}
            v_sub_f32 {t2}, {t2}, {t3}
            v_cvt_pk_bf16_f32 {t2}, {t2}, 0
            v_cndmask_b32 {self.augB[1]}, {t2}, {t}, {self.sLo}
            v_mul_f32 {vC2[0]}, {LOG2E}, {vRs2[0]}
            v_mul_f32 {vM2[0]}, -2.0, {vRs2[0]}
            s_lshl_b32 {self.sT0}, {self.sV}, 7
            s_lshl2_add_u32 {self.sF4}, {self.sT}, {self.sT0}
            s_add_u32 {self.sF4}, {self.sF4}, {self.sFl}""")
        with self.seg() as f2:
            mish(0, 0, False)
            mish(0, 1, False)
        n1 = self.o("p2_n1", 9)
        with self.seg() as ma:
            for ks in range(n1):
                K(f"{MF32} {accs[2]}, {self.C2[4*ks:4*ks+4]}, {H[4*ks:4*ks+4]}, {accs[2] if ks else 0}")
        with self.seg() as mb:
            for c in (0, 1):
                K(f"{MF32} {accs[c]}, {augA[c]}, {self.augB}, {accs[c]}")
            for ks in range(n1, 32):
                K(f"{MF32} {accs[2]}, {self.C2[4*ks:4*ks+4]}, {H[4*ks:4*ks+4]}, {accs[2]}")
            K(f"{MF32} {accs[2]}, {augA[2]}, {self.augB}, {accs[2]}")
        self.emit(self.weave(interleave(ma, f1, 6), None, every=self.o("p2_every", 3)))
        lead = Prog(mb[:3])
        self.emit(lead)
        self.emit(self.weave(interleave(Prog(mb[3:]), f2, self.o("p2_per", 6)), None, every=self.o("p2_every", 3)))
        self.C2.free()
        self.stamp("c2")
        for r in (st, vS, sH, sSt, sHr, self.sF3, self.sOff):
            r.free()
        with self.seg() as e:
            mish(1, 0, True)
            mish(1, 1, True)
        self.emit(self.sprinkle(e, self.o("gap_m1", 24), first=0))
        self.stamp("mish1")
        R = A.alloc(84)
        frag = lambda z: act[4 * z:4 * z + 4] if z < 7 else R[4 * (z - 7):4 * (z - 7) + 4]
        K(f"""s_lshl_b32 {self.sT0}, {self.sV}, 5
        s_lshl2_add_u32 {self.sT0}, {self.sG}, {self.sT0}
        v_add_lshl_u32 {vA}, {self.vC}, {self.sT0}, 2""")

        def rloads(zs):
            gs = []
            for z in zs:
                i, ks = USE[z]
                with self.seg() as g:
                    if ks == 4:
                        K(f"s_add_u32 {self.sAct[i]}, {self.sAct[i]}, 4096")
                    K(f"buffer_load_dwordx4 {frag(z)}, {self.vL16}, {self.sWS}, {self.sAct[i]} offen offset:{(ks%4)*1024} sc1")
                gs.append(g)
            return gs

        def grp(fn):
            with self.seg() as g:
                fn()
            return g

        flag = lambda tag, off: grp(lambda: (self.P.waitvm(tag), self.set_flag(self.sF4, off)))
        m = gemm1([3])
        m.append(Ins(f"{MF32} {accs[3]}, {augA[3]}, {self.augB}, {accs[3]}"))
        m = self.weave(m, None, every=self.o("p3_every", 4), start=0)
        m = self.weave(m, [flag("asta", FL_E4A)], start=self.o("e4a_flag", 16))
        m = self.weave(m, [grp(lambda: self.poll_issue(vA, FL_E4A, "pl"))], start=self.o("e4a_poll", 28))
        self.emit(m)
        self.stamp("c3")
        H.free()
        vd = [V.alloc(4) for _ in range(3)]
        la = rloads(range(7, 19)) + [grp(lambda: self.set_flag(self.sF4, FL_E4A, safe=True))]
        with self.seg() as e:
            mish(2, 0, True)
        self.emit(e)
        self.poll_check(vA, FL_E4A, [(self.sF4, FL_E4A)])
        with self.seg() as e:
            mish(2, 1, True)
            mish(3, 0, True)
            K(f"""v_lshl_add_u32 {t}, {self.vG}, 2, {self.vR}
            v_lshlrev_b32 {t}, 8, {t}
            v_lshl_add_u32 {t2}, {self.vH16}, 2, {self.vC}
            v_lshl_add_u32 {t}, {t2}, 3, {t}""")
            for ci in range(4):
                K(f"""v_xor_b32 {t2}, {ci}, {self.vR}
                v_lshl_add_u32 {vd[0][ci]}, {t2}, 6, {t}
                v_add_u32 {vd[1][ci]}, 0x10000, {vd[0][ci]}
                v_add_u32 {vd[2][ci]}, 0x20000, {vd[0][ci]}""")
        saved, self.bgq = self.bgq, deque((None, "x", g) for g in la)
        self.emit(self.sprinkle(e, self.o("gap_m2", 14), first=0))
        la = [g for _, _, g in self.bgq]
        self.bgq = saved
        for r in augA + [tm, vr, vRs2, vC2, vM2, vSd, self.augB]:
            r.free()
        self.bg_flush("w2o")
        self.P.waitvm("w2o")
        K("s_barrier")
        self.stamp("mish23")
        seq = [(z, ci) for z in range(19) for ci in (1, 2, 3)] + [(z, ci) for ci in (1, 2, 3) for z in range(19, 28)] + [(z, 0) for z in range(28)]
        started = set()
        with self.seg() as m:
            def rd(i):
                z, ci = seq[i]
                if (z, ci) == (7, 1) or (z, ci) == (19, 1):
                    K("@need " + ("w2a" if z == 7 else "w2b"))
                a = w2slot(z)
                self.trread(Wb[4 * (i % nb):4 * (i % nb) + 4], vd[a >> 16][ci], a & 0xffff, (a & 0xffff) + 2048)
            for i in range(pre):
                rd(i)
            for i, (z, ci) in enumerate(seq):
                if i + pre < len(seq):
                    rd(i + pre)
                K(f"{MF32} {accs[ci]}, {Wb[4*(i%nb):4*(i%nb)+4]}, {frag(z)}, {accs[ci] if ci in started else 0}")
                started.add(ci)
        assert len(la) <= 10
        m = self.weave(m, la, every=2)
        assert not la
        m = self.weave(m, [flag("astb", FL_E4B)], start=self.o("e4b_flag", 10))
        m = self.weave(m, [grp(lambda: self.poll_issue(vA, FL_E4B, "pl"))], start=self.o("e4b_poll", 22))
        lb = [grp(lambda: self.poll_check(vA, FL_E4B, [(self.sF4, FL_E4B)]))] + rloads(range(19, 28)) + [grp(lambda: self.set_flag(self.sF4, FL_E4B, safe=True))]
        m = self.weave(m, lb, start=self.o("e4b_chk", 30), every=1)
        assert not lb
        out, n = Prog(), 0
        for ins in m:
            if ins.op == "@need":
                with self.seg() as g:
                    self.bg_flush(ins.arg)
                    self.P.waitvm(ins.arg)
                    K("s_barrier")
                out.extend(g)
                continue
            out.append(ins)
            if big(ins):
                n += 1
                if n % self.o("d_every", 2) == 0:
                    g = self.bg_pop()
                    if g is not None:
                        out.extend(g)
        m = out
        pb = [V.alloc(8) for _ in range(3)]
        sel = V.alloc(8)
        sP = S.alloc(4, 1)
        vA5, vW, vR2, vO = V.alloc(), V.alloc(), V.alloc(), V.alloc()
        sA, sB = S.alloc(), S.alloc()
        with self.seg() as su:
            for ci in range(1, 4):
                K(f"""s_add_u32 {self.sT0}, {self.sG}, {ci}
                s_and_b32 {self.sT0}, {self.sT0}, 3
                s_lshl2_add_u32 {self.sT0}, {self.sQ}, {self.sT0}
                s_mul_i32 {self.sT0}, {self.sT0}, 3
                s_add_u32 {self.sT0}, {self.sT0}, {ci-1}
                s_lshl2_add_u32 {self.sT0}, {self.sT0}, {self.sV}
                s_lshl_b32 {self.sT0}, {self.sT0}, 11
                s_add_u32 {self.sT0}, {self.sT0}, {self.sRBB}
                s_add_u32 {sP[ci]}, {self.sT0}, {RB_PART}""")
            K(f"""s_lshl2_add_u32 {self.sT0}, {self.sQ}, {self.sG}
            s_lshl_b32 {self.sT1}, {self.sT0}, 6
            s_add_u32 {sA}, {self.sT1}, {self.sXrow}
            s_add_u32 {sB}, {sA}, 16384
            s_mul_i32 {self.sT0}, {self.sT0}, 12
            s_add_u32 {self.sT0}, {self.sT0}, {self.sV}
            s_lshl_b32 {self.sT0}, {self.sT0}, 11
            s_add_u32 {self.sT0}, {self.sT0}, {self.sRBB}
            s_add_u32 {sP[0]}, {self.sT0}, {RB_PART}
            s_lshl_b32 {self.sT0}, {self.sV}, 5
            s_add_u32 {self.sT0}, {self.sT0}, {self.sQ}
            v_lshlrev_b32 {vA5}, 2, {self.vC}
            v_add_lshl_u32 {vA5}, {vA5}, {self.sT0}, 2
            s_mul_i32 {self.sT0}, {self.sV}, 2560
            s_add_u32 {self.sT0}, {self.sT0}, {L_OUT}
            v_mul_u32_u24 {vW}, 80, {self.vN}
            v_lshl_add_u32 {vW}, {self.vG}, 3, {vW}
            v_add_u32 {vW}, {self.sT0}, {vW}
            v_lshrrev_b32 {t}, 2, {self.vL}
            v_mul_u32_u24 {vR2}, 80, {t}
            v_lshl_add_u32 {vR2}, {self.vC}, 4, {vR2}
            v_add_u32 {vR2}, {self.sT0}, {vR2}
            v_lshlrev_b32 {vO}, 10, {t}
            v_lshl_add_u32 {vO}, {self.vC}, 4, {vO}""")
        gs = [Prog(su[j:j + 3]) for j in range(0, len(su), 3)]
        m = self.weave(m, gs, start=42)
        assert not gs
        m = self.weave(m, [grp(lambda: self.selector(sel, False))], start=62)
        for ci in range(1, 4):
            p = pb[ci - 1]
            gs = []
            for h in range(2):
                for r in range(4 * h, 4 * h + 4, 2):
                    gs.append(Prog()(f"""v_cvt_pk_bf16_f32 {p[r]}, {accs[ci][2*r]}, {accs[ci][2*r+1]}
                    v_cvt_pk_bf16_f32 {p[r+1]}, {accs[ci][2*r+2]}, {accs[ci][2*r+3]}"""))
                gs[-1](f"buffer_store_dwordx4 {p[4*h:4*h+4]}, {self.vL16}, {self.sWS}, {sP[ci]} offen offset:{1024*h} sc1", "pst")
            m = self.weave(m, gs, start=57 + 9 * ci + 1)
            assert not gs
        m = self.weave(m, [flag("pst", FL_E5)], start=self.o("e5_flag", 102))
        self.emit(m)
        K(f"""{MF32} {accs[0]}, {sel[0:4]}, {hres[0:4]}, {accs[0]}
        {MF32} {accs[0]}, {sel[4:8]}, {hres[4:8]}, {accs[0]}""")
        self.stamp("dgemm")
        self.poll_issue(vA5, FL_E5, "pl")
        self.poll_check(vA5, FL_E5, [(self.sF4, FL_E5)])
        self.stamp("e5")
        for s in range(3):
            if s:
                K(f"s_add_u32 {sP[0]}, {sP[0]}, 8192")
            K(f"""buffer_load_dwordx4 {pb[s][0:4]}, {self.vL16}, {self.sWS}, {sP[0]} offen sc1
            buffer_load_dwordx4 {pb[s][4:8]}, {self.vL16}, {self.sWS}, {sP[0]} offen offset:1024 sc1""")
        self.set_flag(self.sF4, FL_E5, safe=True)
        for s in range(3):
            K(f"""{MF32} {accs[0]}, {sel[0:4]}, {pb[s][0:4]}, {accs[0]}
            {MF32} {accs[0]}, {sel[4:8]}, {pb[s][4:8]}, {accs[0]}""")
        self.stamp("psum")
        ob = Wb
        for i in range(4):
            K(f"""v_cvt_pk_bf16_f32 {ob[2*i]}, {accs[0][4*i]}, {accs[0][4*i+1]}
            v_cvt_pk_bf16_f32 {ob[2*i+1]}, {accs[0][4*i+2]}, {accs[0][4*i+3]}
            ds_write_b64 {vW}, {ob[2*i:2*i+2]} offset:{16*i}""")
        fl = self.o("outflags", "")
        K(f"""s_waitcnt lgkmcnt(0)
        ds_read_b128 {ob[8:12]}, {vR2}
        ds_read_b128 {ob[12:16]}, {vR2} offset:1280
        buffer_store_dwordx4 {ob[8:12]}, {vO}, {self.sOUT}, {sA} offen {fl}
        buffer_store_dwordx4 {ob[12:16]}, {vO}, {self.sOUT}, {sB} offen {fl}""")
        Le = self.label("ep")
        K(f"""s_or_b32 {self.sT0}, s2, {self.sV}
        s_cmp_lg_u32 {self.sT0}, 0
        s_cbranch_scc1 {Le}
        buffer_store_dword {self.vTag}, {self.vZero}, {self.sWS}, 0 offen offset:{WS_EPOCH} sc1
        {Le}:""")
        if self.stamps:
            K("s_waitcnt vmcnt(0)")
            self.stamp("end")
            K(f"""s_lshl2_add_u32 {self.sT0}, s2, {self.sV}
            s_lshl_b32 {self.sT0}, {self.sT0}, 8
            s_add_u32 {self.sT0}, {self.sT0}, {WS_STAMP}
            v_lshlrev_b32 {t}, 2, {self.vL}
            buffer_store_dword {self.vStamp}, {t}, {self.sWS}, {self.sT0} offen""")
        assert not self.bgq

    def build(self):
        self.prologue()
        self.phase_a()
        self.phase_b()
        self.phase_cd()
        self.K("s_endpgm")
        body = render(insert_nops(insert_waits(self.P))) + "\n" + render(insert_nops(self.tail)) + "\nL_end:\n    s_endpgm"
        header = open("cdna_kernels/" + NAME + ".s.ref").read().split("; Override launch")[0]
        return f"""{header}; @launch grid=(256,1,1) block=(256,1,1) lds=163840
.amdgcn_target "amdgcn-amd-amdhsa--gfx950"
.text
.globl {NAME}_kernel
.p2align 8
.type {NAME}_kernel,@function
{NAME}_kernel:
{body}
.section .rodata,"a"
.p2align 6
.amdhsa_kernel {NAME}_kernel
  .amdhsa_next_free_vgpr 512
  .amdhsa_next_free_sgpr 102
  .amdhsa_accum_offset 256
  .amdhsa_group_segment_fixed_size 0
  .amdhsa_kernarg_size 88
  .amdhsa_user_sgpr_count 2
  .amdhsa_user_sgpr_kernarg_segment_ptr 1
  .amdhsa_system_sgpr_workgroup_id_x 1
.end_amdhsa_kernel
"""


if __name__ == "__main__":
    import json
    out = sys.argv[1]
    stamps = len(sys.argv) > 2 and sys.argv[2] == "1"
    opt = json.loads(sys.argv[3]) if len(sys.argv) > 3 else {}
    g = Gen(stamps=stamps, opt=opt)
    text = g.build()
    open(out, "w").write(text)
    if stamps:
        open(out + ".stamps", "w").write("\n".join(g.stamp_names))
    print("vgpr high", g.V.high, "agpr high", g.A.high, "sgpr high", g.S.high, "lines", text.count("\n"))
```
